```python
import torch

def _softmax(x, axis=-1):
    return torch.softmax(x, dim=axis)

def _gelu(x):
    return torch.nn.functional.gelu(x, approximate='tanh')

def _silu(x):
    return torch.nn.functional.silu(x)

def _sigmoid(x):
    return torch.sigmoid(x)

def _layernorm(x, axis=-1, eps=1e-05):
    m = x.mean(dim=axis, keepdim=True)
    v = x.var(dim=axis, keepdim=True, unbiased=False)
    return (x - m) / torch.sqrt(v + eps)

def _scatter_add(tgt, idx, src, axis=0):
    return tgt.clone().index_add_(axis, idx, src)

def _segment_sum(src, seg, n):
    out = torch.zeros((n,) + src.shape[1:], dtype=src.dtype)
    return out.index_add_(0, seg, src)

def _pad(x, pw):
    flat = tuple((v for pair in reversed(pw) for v in pair))
    return torch.nn.functional.pad(x, flat)
kernel_name = 'concat_heads__sliding_block__memory_aug_recurrent_mem_tr__prompt'

def setup_inputs():

    _w = lambda a: (lambda t: t.to(torch.bfloat16) if t.is_floating_point() else t)(torch.as_tensor(a))

    def _A_setup():
        B, S, D = (1, 2048, 1024)
        return {'x': _w((lambda *s: torch.randn(*s, dtype=torch.bfloat16) * 0.2)(B, S, D)), 'wqkv': _w((lambda *s: torch.randn(*s, dtype=torch.bfloat16) * 0.2)(D, 3 * D)), 'wo': _w((lambda *s: torch.randn(*s, dtype=torch.bfloat16) * 0.05)(D, D))}
    _A_in = _A_setup()

    def _B_setup():
        B, S, Dm = (1, 2048, 1024)
        H, Dh = (32, 128)
        M, seg = (8, 32)
        seg = min(seg, S)
        S = S // seg * seg
        return {'x': _w((lambda *s: torch.randn(*s, dtype=torch.bfloat16) * 0.05)(B, S, Dm)), 'mem0': _w((lambda *s: torch.randn(*s, dtype=torch.bfloat16) * 1.6)(B, M, Dm)), 'Wq': _w((lambda *s: torch.randn(*s, dtype=torch.bfloat16) * 0.8)(Dm, H, Dh) * Dm ** (-0.5)), 'Wk': _w((lambda *s: torch.randn(*s, dtype=torch.bfloat16) * 0.8)(Dm, H, Dh) * Dm ** (-0.5)), 'Wv': _w((lambda *s: torch.randn(*s, dtype=torch.bfloat16) * 1.6)(Dm, H, Dh) * Dm ** (-0.5)), 'Wo': _w((lambda *s: torch.randn(*s, dtype=torch.bfloat16) * 1.6)(H, Dh, Dm) * (H * Dh) ** (-0.5)), 'seg_len': seg}
    _B_in = _B_setup()
    return {'A_x': _A_in['x'], 'A_wqkv': _A_in['wqkv'], 'A_wo': _A_in['wo'], 'B_x': _B_in['x'], 'B_mem0': _B_in['mem0'], 'B_Wq': _B_in['Wq'], 'B_Wk': _B_in['Wk'], 'B_Wv': _B_in['Wv'], 'B_Wo': _B_in['Wo'], 'B_seg_len': _B_in['seg_len']}

def reference(A_x, A_wqkv, A_wo, B_x, B_mem0, B_Wq, B_Wk, B_Wv, B_Wo, B_seg_len):

    def _A_ref(x, wqkv, wo):
        B, S, D = x.shape
        H = 32
        Dh = D // H
        W = 256
        qkv = (lambda x, *d: x.permute(*d))((x @ wqkv).reshape(B, S, 3, H, Dh), 2, 0, 3, 1, 4)
        q, k, v = (qkv[0], qkv[1], qkv[2])
        scores = torch.einsum('bhqd,bhkd->bhqk', q, k) * Dh ** (-0.5)
        idx = torch.arange(S)
        mask = (idx[:, None] - idx[None, :] >= 0) & (idx[:, None] - idx[None, :] < W)
        scores = torch.where(mask[None, None], scores, -1000000000.0)
        p = _softmax(scores, axis=-1)
        o = torch.einsum('bhqk,bhkd->bhqd', p, v)
        return (lambda x, *d: x.permute(*d))(o, 0, 2, 1, 3).reshape(B, S, D) @ wo

    def _B_ref(x, mem0, Wq, Wk, Wv, Wo, seg_len):
        B, S, Dm = x.shape
        H, Dh = (Wq.shape[1], Wq.shape[2])
        M = mem0.shape[1]
        scale = Dh ** (-0.5)
        n_seg = S // seg_len
        L = M + seg_len
        idx = torch.arange(L)
        mask = (idx[:, None] < M) | (idx[:, None] >= idx[None, :])
        mem = mem0
        outs = []
        for s in range(n_seg):
            xs = x[:, s * seg_len:(s + 1) * seg_len, :].clone()
            h = torch.concatenate([mem, xs], axis=1)
            q = torch.einsum('btd,dhe->bhte', h, Wq)
            k = torch.einsum('btd,dhe->bhte', h, Wk)
            v = torch.einsum('btd,dhe->bhte', h, Wv)
            scores = torch.einsum('bhqe,bhke->bhqk', q, k) * scale
            scores = torch.where(mask[None, None], scores, -1000000000.0)
            p = _softmax(scores, axis=-1)
            o = torch.einsum('bhqk,bhke->bhqe', p, v)
            o = torch.einsum('bhte,hed->btd', o, Wo)
            mem = o[:, :M, :].clone()
            outs.append(o[:, M:, :])
        return torch.concatenate(outs, axis=1)
    a = _A_ref(A_x, A_wqkv, A_wo)
    b = _B_ref(B_x, B_mem0, B_Wq, B_Wk, B_Wv, B_Wo, B_seg_len)
    return torch.concatenate([a, b], axis=-1)
```

```python
class Asm:
    def __init__(self):
        self.lines = []
        self.uid = 0
    def __call__(self, s):
        for ln in s.strip("\n").split("\n"):
            self.lines.append("    " + ln.strip())
    def label(self, l):
        self.lines.append(l + ":")
    def newlabel(self, p="L"):
        self.uid += 1
        return f"{p}_{self.uid}"
    def raw(self, s):
        self.lines.append(s)
    def text(self):
        return "\n".join(self.lines) + "\n"

def kernel_header(a, name):
    a.raw(f".globl {name}")
    a.raw(".p2align 8")
    a.raw(f".type {name},@function")
    a.label(name)

def descriptor(name, vgpr, sgpr=102, accum=None):
    acc = accum if accum is not None else ((vgpr + 3) // 4) * 4
    return f""".amdhsa_kernel {name}
  .amdhsa_next_free_vgpr {vgpr}
  .amdhsa_next_free_sgpr {sgpr}
  .amdhsa_accum_offset {acc}
  .amdhsa_group_segment_fixed_size 0
  .amdhsa_kernarg_size 104
  .amdhsa_user_sgpr_count 2
  .amdhsa_user_sgpr_kernarg_segment_ptr 1
  .amdhsa_system_sgpr_workgroup_id_x 1
.end_amdhsa_kernel
"""

SLOT = dict(A_x=0, A_wqkv=8, A_wo=16, B_x=24, B_mem0=32, B_Wq=40, B_Wk=48, B_Wv=56, B_Wo=64, seg=72, out=80, dbg=88, ws=96)
WS_SIZE = 268435456
WS = dict(
    qkvA=0x0000000, Qx=0x0C00000, Kx=0x1C00000, Vx=0x2C00000, oA=0x3C00000, oB=0x4000000,
    kmem=0x5000000, vmem=0x5400000, memacc=0x5800000, e1=0x5A00000, cnt=0x5B00000)

def make_srd(a, s, slot, size, wsoff=0, tmp=None):
    a(f"s_load_dwordx2 s[{s}:{s+1}], s[0:1], {slot}")
    a("s_waitcnt lgkmcnt(0)")
    if wsoff:
        a(f"s_add_u32 s{s}, s{s}, 0x{wsoff:x}")
        a(f"s_addc_u32 s{s+1}, s{s+1}, 0")
    a(f"s_mov_b32 s{s+2}, 0x{size:x}")
    a(f"s_mov_b32 s{s+3}, 0x00020000")
```

```python
from asmlib import *
A2_LDS = 4 * 9 * 2048
SCALE_A = 0x3E3504F3

def gen_attn_a(a, name):
    kernel_header(a, name)
    done = a.newlabel("aa_done")
    a(f"""
    s_cmp_ge_u32 s2, 512
    s_cbranch_scc1 {done}
    v_and_b32 v1, 63, v0
    v_lshrrev_b32 v2, 6, v0
    s_nop 0
    v_readfirstlane_b32 s38, v2
    s_nop 3
    s_lshl_b32 s3, s2, 2
    s_add_u32 s3, s3, s38
    s_lshr_b32 s36, s3, 6
    s_and_b32 s37, s3, 63
    s_lshl_b32 s37, s37, 5
    """)
    make_srd(a, 8, SLOT['ws'], 2048*3072*2, WS['qkvA'])
    make_srd(a, 12, SLOT['ws'], 2048*1024*2, WS['oA'])
    a("""
    v_and_b32 v2, 31, v1
    v_mul_u32_u24 v3, 6144, v2
    v_lshrrev_b32 v4, 5, v1
    v_lshlrev_b32 v5, 4, v4
    v_add_u32 v3, v3, v5
    s_lshl_b32 s3, s36, 6
    v_add_u32 v3, s3, v3
    s_mul_i32 s4, s37, 6144
    buffer_load_dwordx4 v[8:11], v3, s[8:11], s4 offen
    buffer_load_dwordx4 v[12:15], v3, s[8:11], s4 offen offset:32
    """)
    a("""
    v_lshrrev_b32 v2, 2, v1
    v_mul_u32_u24 v6, 6144, v2
    v_and_b32 v5, 3, v1
    v_lshlrev_b32 v5, 4, v5
    v_add_u32 v6, v6, v5
    s_add_u32 s3, s3, 4096
    v_add_u32 v6, s3, v6
    s_mul_i32 s33, s38, 18432
    """)
    for t in range(9):
        skip = a.newlabel("aa_sk")
        nxt = a.newlabel("aa_nx")
        acc = 64 + 16 * t
        a(f"""
        s_add_u32 s5, s37, {32*t}
        s_cmp_lt_u32 s5, 256
        s_cbranch_scc1 {skip}
        s_sub_u32 s5, s5, 256
        s_mul_i32 s4, s5, 6144
        buffer_load_dwordx4 v[16:19], v3, s[8:11], s4 offen offset:2048
        buffer_load_dwordx4 v[20:23], v3, s[8:11], s4 offen offset:2080
        s_add_u32 m0, s33, {t*2048}
        s_nop 0
        buffer_load_dwordx4 v6, s[8:11], s4 offen lds
        s_add_u32 s4, s4, {16*6144}
        s_add_u32 m0, s33, {t*2048+1024}
        s_nop 0
        buffer_load_dwordx4 v6, s[8:11], s4 offen lds
        """)
        for i in range(16):
            a(f"v_mov_b32 v{acc+i}, 0")
        a("s_waitcnt vmcnt(0)")
        a(f"v_mfma_f32_32x32x16_bf16 v[{acc}:{acc+15}], v[16:19], v[8:11], v[{acc}:{acc+15}]")
        a(f"v_mfma_f32_32x32x16_bf16 v[{acc}:{acc+15}], v[20:23], v[12:15], v[{acc}:{acc+15}]")
        a("s_nop 7")
        a(f"s_branch {nxt}")
        a.label(skip)
        for i in range(16):
            a(f"v_mov_b32 v{acc+i}, 0xff800000")
        a.label(nxt)
    a("s_nop 15")
    a(f"s_mov_b32 s3, 0x{SCALE_A:x}")
    for r in range(64, 208):
        a(f"v_cvt_pk_bf16_f32 v{r}, v{r}, v{r}")
        a(f"v_lshlrev_b32 v{r}, 16, v{r}")
        a(f"v_mul_f32 v{r}, s3, v{r}")
        a(f"v_cvt_pk_bf16_f32 v{r}, v{r}, v{r}")
        a(f"v_lshlrev_b32 v{r}, 16, v{r}")
    a("""
    v_and_b32 v2, 31, v1
    v_lshrrev_b32 v4, 5, v1
    v_lshlrev_b32 v4, 2, v4
    v_sub_u32 v2, v2, v4
    v_mov_b32 v5, 0xff800000
    """)
    for r in range(16):
        kb = 8 * (r >> 2) + (r & 3)
        a(f"v_cmp_gt_i32 vcc, {kb}, v2")
        a(f"v_cndmask_b32 v{64+r}, v5, v{64+r}, vcc")
        a(f"v_cmp_le_i32 vcc, {kb}, v2")
        a(f"v_cndmask_b32 v{192+r}, v5, v{192+r}, vcc")
    a("v_max_f32 v7, v64, v65")
    for r in range(66, 208, 2):
        a(f"v_max3_f32 v7, v7, v{r}, v{r+1}")
    a("""
    v_xor_b32 v2, 32, v1
    v_lshlrev_b32 v2, 2, v2
    ds_bpermute_b32 v4, v2, v7
    s_waitcnt lgkmcnt(0)
    v_max_f32 v7, v7, v4
    s_mov_b32 s3, 0x3fb8aa3b
    v_mul_f32 v7, s3, v7
    v_mov_b32 v5, 0
    """)
    for r in range(64, 208):
        a(f"v_fma_f32 v{r}, v{r}, s3, -v7")
        a(f"v_exp_f32 v{r}, v{r}")
        a("s_nop 0")
        a(f"v_add_f32 v5, v5, v{r}")
    a("""
    ds_bpermute_b32 v4, v2, v5
    s_waitcnt lgkmcnt(0)
    v_add_f32 v5, v5, v4
    v_rcp_f32 v5, v5
    s_nop 0
    """)
    for r in range(64, 208, 2):
        a(f"v_mul_f32 v{r}, v{r}, v5")
        a(f"v_mul_f32 v{r+1}, v{r+1}, v5")
        a(f"v_cvt_pk_bf16_f32 v{64+(r-64)//2}, v{r}, v{r+1}")
    a("""
    v_lshrrev_b32 v2, 5, v1
    v_lshlrev_b32 v2, 2, v2
    v_bfe_u32 v4, v1, 2, 2
    v_add_u32 v2, v2, v4
    v_lshlrev_b32 v6, 6, v2
    v_bfe_u32 v4, v1, 4, 1
    v_lshlrev_b32 v4, 5, v4
    v_add_u32 v6, v6, v4
    v_and_b32 v4, 3, v1
    v_lshlrev_b32 v4, 3, v4
    v_add_u32 v6, v6, v4
    v_add_u32 v6, s33, v6
    """)
    for i in range(16):
        a(f"v_mov_b32 v{208+i}, 0")
    for t in range(9):
        skip = a.newlabel("aa_pk")
        a(f"""
        s_add_u32 s5, s37, {32*t}
        s_cmp_lt_u32 s5, 256
        s_cbranch_scc1 {skip}
        """)
        for s2 in range(2):
            for part in range(2):
                a(f"ds_read_b64_tr_b16 v[{16+4*s2+2*part}:{17+4*s2+2*part}], v6 offset:{t*2048 + (16*s2+8*part)*64}")
        a("s_waitcnt lgkmcnt(0)")
        for s2 in range(2):
            p = 64 + 8 * t + 4 * s2
            a(f"v_mfma_f32_32x32x16_bf16 v[208:223], v[{16+4*s2}:{19+4*s2}], v[{p}:{p+3}], v[208:223]")
        a("s_nop 7")
        a.label(skip)
    a("s_nop 15")
    a("""
    v_and_b32 v2, 31, v1
    v_add_u32 v2, s37, v2
    v_lshlrev_b32 v2, 11, v2
    v_lshrrev_b32 v4, 5, v1
    v_lshlrev_b32 v4, 3, v4
    v_add_u32 v2, v2, v4
    s_lshl_b32 s3, s36, 6
    v_add_u32 v2, s3, v2
    """)
    for jj in range(4):
        a(f"v_cvt_pk_bf16_f32 v{16+2*jj}, v{208+4*jj}, v{209+4*jj}")
        a(f"v_cvt_pk_bf16_f32 v{17+2*jj}, v{210+4*jj}, v{211+4*jj}")
        a(f"buffer_store_dwordx2 v[{16+2*jj}:{17+2*jj}], v2, s[12:15], 0 offen offset:{jj*16}")
    a.label(done)
    a("s_endpgm")
```

```python
from asmlib import *
B3_LDS = 4 * 16384
SCALE_B = 0x3DB504F3

def gen_attn_b(a, name):
    kernel_header(a, name)
    done = a.newlabel("ab_done")
    a(f"""
    s_cmp_ge_u32 s2, 512
    s_cbranch_scc1 {done}
    v_and_b32 v1, 63, v0
    v_lshrrev_b32 v2, 6, v0
    s_nop 0
    v_readfirstlane_b32 s38, v2
    s_nop 3
    s_lshl_b32 s3, s2, 2
    s_add_u32 s3, s3, s38
    s_lshr_b32 s37, s3, 5
    s_and_b32 s36, s3, 31
    """)
    make_srd(a, 8, SLOT['ws'], 2048*4096*2, WS['Qx'])
    make_srd(a, 12, SLOT['ws'], 2048*4096*2, WS['Kx'])
    make_srd(a, 16, SLOT['ws'], 2048*4096*2, WS['Vx'])
    make_srd(a, 20, SLOT['ws'], 0x400000, WS['kmem'])
    make_srd(a, 24, SLOT['ws'], 0x400000, WS['vmem'])
    make_srd(a, 28, SLOT['ws'], 2048*4096*2, WS['oB'])
    a("""
    v_and_b32 v2, 31, v1
    v_lshlrev_b32 v3, 13, v2
    v_lshrrev_b32 v4, 5, v1
    v_lshlrev_b32 v5, 4, v4
    v_add_u32 v3, v3, v5
    s_lshl_b32 s3, s36, 8
    v_add_u32 v3, s3, v3
    s_lshl_b32 s4, s37, 18
    s_lshl_b32 s5, s37, 16
    """)
    for ks in range(8):
        a(f"buffer_load_dwordx4 v[{8+4*ks}:{11+4*ks}], v3, s[8:11], s4 offen offset:{32*ks}")
    for ks in range(8):
        a(f"buffer_load_dwordx4 v[{40+4*ks}:{43+4*ks}], v3, s[20:23], s5 offen offset:{32*ks}")
    for ks in range(8):
        a(f"buffer_load_dwordx4 v[{72+4*ks}:{75+4*ks}], v3, s[12:15], s4 offen offset:{32*ks}")
    a("""
    v_lshrrev_b32 v2, 4, v1
    v_lshlrev_b32 v6, 13, v2
    v_bfe_u32 v4, v1, 2, 2
    v_xor_b32 v4, v4, v2
    v_lshlrev_b32 v4, 6, v4
    v_add_u32 v6, v6, v4
    v_and_b32 v4, 3, v1
    v_lshlrev_b32 v4, 4, v4
    v_add_u32 v6, v6, v4
    v_add_u32 v6, s3, v6
    s_lshl_b32 s33, s38, 14
    s_mov_b32 s6, s5
    s_mov_b32 s7, s4
    """)
    for i in range(8):
        a(f"s_add_u32 m0, s33, {i*1024}")
        a("s_nop 0")
        a("buffer_load_dwordx4 v6, s[24:27], s6 offen lds")
        a("s_add_u32 s6, s6, 0x8000")
    for i in range(8):
        a(f"s_add_u32 m0, s33, {8192+i*1024}")
        a("s_nop 0")
        a("buffer_load_dwordx4 v6, s[16:19], s7 offen lds")
        a("s_add_u32 s7, s7, 0x8000")
    for i in range(32):
        a(f"v_mov_b32 v{104+i}, 0")
    a("s_waitcnt vmcnt(16)")
    for ks in range(8):
        a(f"v_mfma_f32_32x32x16_bf16 v[104:119], v[{40+4*ks}:{43+4*ks}], v[{8+4*ks}:{11+4*ks}], v[104:119]")
    for ks in range(8):
        a(f"v_mfma_f32_32x32x16_bf16 v[120:135], v[{72+4*ks}:{75+4*ks}], v[{8+4*ks}:{11+4*ks}], v[120:135]")
    a("s_nop 15")
    a(f"s_mov_b32 s3, 0x{SCALE_B:x}")
    for r in range(104, 136):
        a(f"v_cvt_pk_bf16_f32 v{r}, v{r}, v{r}")
        a(f"v_lshlrev_b32 v{r}, 16, v{r}")
        a(f"v_mul_f32 v{r}, s3, v{r}")
        a(f"v_cvt_pk_bf16_f32 v{r}, v{r}, v{r}")
        a(f"v_lshlrev_b32 v{r}, 16, v{r}")
    a("""
    v_and_b32 v2, 31, v1
    v_lshrrev_b32 v4, 5, v1
    v_lshlrev_b32 v4, 2, v4
    v_sub_u32 v2, v2, v4
    v_mov_b32 v5, 0xff800000
    """)
    for r in range(4, 16):
        a(f"v_mov_b32 v{104+r}, v5")
    for r in range(16):
        kb = 8 * (r >> 2) + (r & 3)
        a(f"v_cmp_le_i32 vcc, {kb}, v2")
        a(f"v_cndmask_b32 v{120+r}, v5, v{120+r}, vcc")
    a("v_max_f32 v7, v104, v105")
    for r in range(106, 136, 2):
        a(f"v_max3_f32 v7, v7, v{r}, v{r+1}")
    a("""
    v_xor_b32 v2, 32, v1
    v_lshlrev_b32 v2, 2, v2
    ds_bpermute_b32 v4, v2, v7
    s_waitcnt lgkmcnt(0)
    v_max_f32 v7, v7, v4
    s_mov_b32 s3, 0x3fb8aa3b
    v_mul_f32 v7, s3, v7
    v_mov_b32 v5, 0
    """)
    for r in range(104, 136):
        a(f"v_fma_f32 v{r}, v{r}, s3, -v7")
        a(f"v_exp_f32 v{r}, v{r}")
        a("s_nop 0")
        a(f"v_add_f32 v5, v5, v{r}")
    a("""
    ds_bpermute_b32 v4, v2, v5
    s_waitcnt lgkmcnt(0)
    v_add_f32 v5, v5, v4
    v_rcp_f32 v5, v5
    s_nop 0
    """)
    for r in range(104, 136, 2):
        a(f"v_mul_f32 v{r}, v{r}, v5")
        a(f"v_mul_f32 v{r+1}, v{r+1}, v5")
        a(f"v_cvt_pk_bf16_f32 v{8+(r-104)//2}, v{r}, v{r+1}")
    a("""
    v_lshrrev_b32 v2, 5, v1
    v_lshlrev_b32 v2, 2, v2
    v_bfe_u32 v4, v1, 2, 2
    v_add_u32 v2, v2, v4
    v_lshlrev_b32 v6, 8, v2
    v_bfe_u32 v2, v1, 4, 1
    v_lshlrev_b32 v2, 5, v2
    v_add_u32 v6, v6, v2
    v_and_b32 v2, 3, v1
    v_lshlrev_b32 v2, 3, v2
    v_add_u32 v6, v6, v2
    v_add_u32 v6, s33, v6
    """)
    for dt in range(4):
        a(f"v_xor_b32 v2, {dt}, v4")
        a(f"v_lshlrev_b32 v2, 6, v2")
        a(f"v_add_u32 v{24+dt}, v6, v2")
    for i in range(64):
        a(f"v_mov_b32 v{40+i}, 0")
    a("s_waitcnt vmcnt(0)")
    for dt in range(4):
        steps = [(0, 0), (1, 0), (1, 1)]
        for si, (tile, s2) in enumerate(steps):
            for part in range(2):
                a(f"ds_read_b64_tr_b16 v[{28+4*si+2*part}:{29+4*si+2*part}], v{24+dt} offset:{tile*8192 + (16*s2+8*part)*256}")
        a("s_waitcnt lgkmcnt(0)")
        for si, (tile, s2) in enumerate(steps):
            p = 8 + 8 * tile + 4 * s2
            a(f"v_mfma_f32_32x32x16_bf16 v[{40+16*dt}:{55+16*dt}], v[{28+4*si}:{31+4*si}], v[{p}:{p+3}], v[{40+16*dt}:{55+16*dt}]")
        a("s_nop 7")
    a("s_nop 15")
    a("""
    v_and_b32 v2, 31, v1
    v_lshlrev_b32 v2, 13, v2
    v_lshrrev_b32 v4, 5, v1
    v_lshlrev_b32 v4, 3, v4
    v_add_u32 v2, v2, v4
    s_lshl_b32 s3, s36, 8
    v_add_u32 v2, s3, v2
    """)
    for dt in range(4):
        for jj in range(4):
            r = 40 + 16 * dt + 4 * jj
            a(f"v_cvt_pk_bf16_f32 v{8+2*jj}, v{r}, v{r+1}")
            a(f"v_cvt_pk_bf16_f32 v{9+2*jj}, v{r+2}, v{r+3}")
            a(f"buffer_store_dwordx2 v[{8+2*jj}:{9+2*jj}], v2, s[28:31], s4 offen offset:{dt*64+jj*16}")
    a.label(done)
    a("s_endpgm")
```

```python
from asmlib import *

L_MEM = 0x0
MEMSTR = 2064
L_K = 0x5000
KSTR = 272
L_V = 0x8400
VSTR = 288
L_Q = 0xBC00
L_O = 0xC800
L_WO = 0x18000
CHAIN_LDS = 0x20000
SCALE_BITS = 0x3DB504F3
SPIN_LIMIT = 1 << 22

def gen_chain(a, name):
    kernel_header(a, name)
    done = a.newlabel("chain_done")
    a("s_cmp_ge_u32 s2, 256")
    a(f"s_cbranch_scc1 {done}")
    a("""
    s_and_b32 s3, s2, 7
    s_lshr_b32 s4, s2, 3
    s_lshr_b32 s5, s4, 3
    s_lshl_b32 s3, s3, 2
    s_add_u32 s36, s3, s5
    s_and_b32 s37, s4, 7
    v_and_b32 v1, 63, v0
    v_lshrrev_b32 v2, 6, v0
    s_nop 0
    v_readfirstlane_b32 s38, v2
    s_nop 3
    """)
    a(f"""
    s_load_dwordx2 s[8:9], s[0:1], {SLOT['B_Wq']}
    s_load_dwordx2 s[12:13], s[0:1], {SLOT['B_Wk']}
    s_load_dwordx2 s[16:17], s[0:1], {SLOT['B_Wv']}
    s_waitcnt lgkmcnt(0)
    s_cmp_eq_u32 s38, 1
    s_cselect_b32 s8, s12, s8
    s_cselect_b32 s9, s13, s9
    s_cmp_eq_u32 s38, 2
    s_cselect_b32 s8, s16, s8
    s_cselect_b32 s9, s17, s9
    s_mov_b32 s10, 0x800000
    s_mov_b32 s11, 0x00020000
    """)
    make_srd(a, 12, SLOT['B_Wo'], 0x800000)
    make_srd(a, 16, SLOT['ws'], WS_SIZE)
    make_srd(a, 20, SLOT['B_mem0'], 8*1024*2)
    make_srd(a, 24, SLOT['ws'], 0x400000, WS['kmem'])
    make_srd(a, 28, SLOT['ws'], 0x400000, WS['vmem'])
    nowp = a.newlabel("chain_nowp")
    a(f"""
    s_cmp_eq_u32 s38, 3
    s_cbranch_scc1 {nowp}
    v_lshrrev_b32 v2, 1, v1
    v_lshlrev_b32 v2, 13, v2
    v_and_b32 v3, 1, v1
    v_lshlrev_b32 v3, 4, v3
    v_add_u32 v2, v2, v3
    s_lshl_b32 s3, s36, 8
    s_lshl_b32 s4, s37, 5
    s_add_u32 s3, s3, s4
    v_add_u32 v2, s3, v2
    s_lshl_b32 s4, s38, 15
    s_mov_b32 s5, 0
    """)
    for i in range(32):
        a(f"s_add_u32 m0, s4, {i*1024}")
        a("s_nop 0")
        a("buffer_load_dwordx4 v2, s[8:11], s5 offen lds")
        a("s_add_u32 s5, s5, 0x40000")
    a.label(nowp)
    a(f"""
    v_lshrrev_b32 v2, 2, v1
    v_lshlrev_b32 v2, 11, v2
    v_and_b32 v3, 3, v1
    v_lshlrev_b32 v3, 4, v3
    v_add_u32 v2, v2, v3
    s_lshl_b32 s3, s36, 18
    s_lshl_b32 s4, s37, 8
    s_add_u32 s3, s3, s4
    s_lshl_b32 s4, s38, 6
    s_add_u32 s3, s3, s4
    v_add_u32 v2, s3, v2
    s_lshl_b32 s4, s38, 13
    s_add_u32 s4, s4, {L_WO}
    s_mov_b32 s5, 0
    """)
    for i in range(8):
        a(f"s_add_u32 m0, s4, {i*1024}")
        a("s_nop 0")
        a("buffer_load_dwordx4 v2, s[12:15], s5 offen lds")
        a("s_add_u32 s5, s5, 0x8000")
    a("s_waitcnt vmcnt(0)")
    a("""
    v_lshrrev_b32 v2, 4, v1
    v_bfe_u32 v3, v1, 2, 2
    v_and_b32 v4, 3, v1
    v_lshlrev_b32 v5, 3, v2
    v_add_u32 v5, v5, v3
    """)
    a(f"""
    v_lshlrev_b32 v6, 6, v5
    v_lshlrev_b32 v7, 3, v4
    v_add_u32 v6, v6, v7
    s_lshl_b32 s4, s38, 13
    s_add_u32 s4, s4, {L_WO}
    v_add_u32 v6, s4, v6
    """)
    for tile in range(2):
        for ks in range(4):
            for part in range(2):
                r = 32 + (tile * 4 + ks) * 4 + part * 2
                a(f"ds_read_b64_tr_b16 v[{r}:{r+1}], v6 offset:{ks*2048 + part*256 + tile*32}")
    nowr = a.newlabel("chain_nowr")
    a(f"""
    s_cmp_eq_u32 s38, 3
    s_cbranch_scc1 {nowr}
    v_lshlrev_b32 v6, 5, v5
    v_lshlrev_b32 v7, 3, v4
    v_add_u32 v6, v6, v7
    s_lshl_b32 s4, s38, 15
    v_add_u32 v6, s4, v6
    """)
    for ks in range(32):
        for part in range(2):
            r = 64 + ks * 4 + part * 2
            a(f"ds_read_b64_tr_b16 v[{r}:{r+1}], v6 offset:{ks*1024 + part*128}")
    a.label(nowr)
    a("s_waitcnt lgkmcnt(0)")
    a("s_barrier")
    a(f"""
    v_mov_b32 v2, 0
    v_mov_b32 v3, 0
    v_mov_b32 v4, 0
    v_mov_b32 v5, 0
    v_lshlrev_b32 v6, 4, v0
    v_cmp_gt_u32 vcc, 144, v0
    s_and_saveexec_b64 s[40:41], vcc
    ds_write_b128 v6, v[2:5] offset:{L_V + 8*VSTR}
    ds_write_b128 v6, v[2:5] offset:{L_K + 8*KSTR}
    s_mov_b64 exec, s[40:41]
    """)
    a(f"""
    v_and_b32 v2, 7, v1
    v_mul_u32_u24 v8, {MEMSTR}, v2
    v_lshrrev_b32 v3, 4, v1
    v_lshlrev_b32 v4, 4, v3
    v_add_u32 v8, v8, v4
    """)
    a(f"""
    v_lshrrev_b32 v2, 5, v0
    v_mul_u32_u24 v9, {MEMSTR}, v2
    v_and_b32 v3, 31, v0
    v_lshlrev_b32 v4, 6, v3
    v_add_u32 v9, v9, v4
    v_lshlrev_b32 v10, 12, v2
    v_lshlrev_b32 v4, 7, v3
    v_add_u32 v10, v10, v4
    """)
    a(f"""
    v_lshrrev_b32 v2, 4, v1
    v_lshlrev_b32 v2, 3, v2
    v_and_b32 v3, 7, v1
    v_add_u32 v2, v2, v3
    v_lshlrev_b32 v11, 4, v2
    s_lshl_b32 s3, s38, 3
    s_add_u32 s3, s3, s37
    s_lshl_b32 s3, s3, 9
    s_mul_i32 s4, s36, 12288
    s_add_u32 s3, s3, s4
    s_add_u32 s3, s3, 0x{WS['e1']:x}
    v_add_u32 v11, s3, v11
    """)
    a(f"""
    v_and_b32 v2, 7, v1
    v_lshlrev_b32 v12, 13, v2
    v_lshrrev_b32 v3, 4, v1
    v_lshlrev_b32 v3, 3, v3
    v_add_u32 v12, v12, v3
    s_lshl_b32 s3, s36, 8
    s_lshl_b32 s4, s37, 5
    s_add_u32 s3, s3, s4
    v_add_u32 v12, s3, v12
    """)
    a(f"""
    v_lshlrev_b32 v13, 4, v0
    s_mul_i32 s4, s36, 12288
    s_add_u32 s4, s4, 0x{WS['e1']:x}
    v_add_u32 v13, s4, v13
    """)
    a(f"""
    v_and_b32 v2, 7, v0
    v_mul_u32_u24 v14, {KSTR}, v2
    v_lshrrev_b32 v3, 5, v0
    v_lshlrev_b32 v3, 5, v3
    v_add_u32 v14, v14, v3
    v_bfe_u32 v3, v0, 3, 2
    v_lshlrev_b32 v3, 3, v3
    v_add_u32 v14, v14, v3
    v_mul_u32_u24 v15, {VSTR}, v2
    v_lshrrev_b32 v3, 5, v0
    v_lshlrev_b32 v3, 5, v3
    v_add_u32 v15, v15, v3
    v_bfe_u32 v3, v0, 3, 2
    v_lshlrev_b32 v3, 3, v3
    v_add_u32 v15, v15, v3
    """)
    a(f"""
    v_lshrrev_b32 v2, 4, v1
    v_lshlrev_b32 v16, 13, v2
    v_and_b32 v3, 15, v1
    v_lshlrev_b32 v4, 4, v3
    v_add_u32 v16, v16, v4
    s_lshl_b32 s3, s36, 8
    v_add_u32 v16, s3, v16
    v_mul_u32_u24 v17, {KSTR}, v2
    v_add_u32 v17, v17, v4
    v_mul_u32_u24 v18, {VSTR}, v2
    v_add_u32 v18, v18, v4
    """)
    a(f"""
    v_and_b32 v2, 7, v1
    v_mul_u32_u24 v19, {KSTR}, v2
    v_lshrrev_b32 v3, 4, v1
    v_lshlrev_b32 v4, 4, v3
    v_add_u32 v19, v19, v4
    v_and_b32 v2, 15, v1
    v_mul_u32_u24 v20, {KSTR}, v2
    v_add_u32 v20, v20, v4
    """)
    a(f"""
    v_lshrrev_b32 v2, 4, v1
    v_lshlrev_b32 v2, 2, v2
    v_bfe_u32 v3, v1, 2, 2
    v_add_u32 v2, v2, v3
    v_mul_u32_u24 v21, {VSTR}, v2
    v_and_b32 v3, 3, v1
    v_lshlrev_b32 v3, 3, v3
    v_add_u32 v21, v21, v3
    s_lshl_b32 s3, s38, 6
    v_add_u32 v21, s3, v21
    """)
    a(f"""
    v_and_b32 v2, 7, v1
    v_mul_u32_u24 v22, {KSTR}, v2
    v_lshrrev_b32 v3, 4, v1
    v_lshlrev_b32 v4, 3, v3
    v_add_u32 v22, v22, v4
    s_lshl_b32 s3, s38, 6
    v_add_u32 v22, s3, v22
    v_lshlrev_b32 v23, 14, v3
    v_and_b32 v2, 15, v1
    v_lshlrev_b32 v2, 2, v2
    v_add_u32 v23, v23, v2
    s_lshl_b32 s3, s37, 9
    s_lshl_b32 s4, s38, 7
    s_add_u32 s3, s3, s4
    v_add_u32 v23, s3, v23
    v_xor_b32 v2, 16, v1
    v_lshlrev_b32 v24, 2, v2
    v_xor_b32 v2, 32, v1
    v_lshlrev_b32 v25, 2, v2
    v_lshlrev_b32 v26, 7, v1
    """)
    a("s_mov_b32 s40, 0")
    loop = a.newlabel("chain_loop")
    first = a.newlabel("chain_first")
    havemem = a.newlabel("chain_havemem")
    a.label(loop)
    a("s_cmp_eq_u32 s40, 0")
    a(f"s_cbranch_scc1 {first}")
    poll = a.newlabel("chain_poll")
    pollx = a.newlabel("chain_pollx")
    a(f"""
    s_lshl_b32 s3, s40, 12
    s_add_u32 s3, s3, 0x{WS['cnt']:x}
    s_mov_b32 s42, 0
    v_cmp_gt_u32 vcc, 32, v1
    s_and_saveexec_b64 s[44:45], vcc
    """)
    a.label(poll)
    a(f"""
    buffer_load_dword v2, v26, s[16:19], s3 offen sc0 sc1
    s_waitcnt vmcnt(0)
    v_cmp_ne_u32 vcc, 8, v2
    s_cbranch_vccz {pollx}
    s_add_u32 s42, s42, 1
    s_cmp_lt_u32 s42, {SPIN_LIMIT}
    s_cbranch_scc1 {poll}
    """)
    a.label(pollx)
    a("s_mov_b64 exec, s[44:45]")
    a(f"""
    s_lshl_b32 s3, s40, 15
    s_add_u32 s3, s3, 0x{WS['memacc']:x}
    """)
    for i in range(8):
        a(f"buffer_load_dwordx4 v[{192+4*i}:{195+4*i}], v10, s[16:19], s3 offen offset:{16*i} sc0 sc1")
    a("s_waitcnt vmcnt(0)")
    for i in range(16):
        a(f"v_cvt_pk_bf16_f32 v{192+i}, v{192+2*i}, v{193+2*i}")
    for i in range(4):
        a(f"ds_write_b128 v9, v[{192+4*i}:{195+4*i}] offset:{L_MEM+16*i}")
    a(f"s_branch {havemem}")
    a.label(first)
    a("v_lshrrev_b32 v2, 5, v0")
    a("v_lshlrev_b32 v2, 11, v2")
    a("v_and_b32 v3, 31, v0")
    a("v_lshlrev_b32 v3, 6, v3")
    a("v_add_u32 v2, v2, v3")
    for i in range(4):
        a(f"buffer_load_dwordx4 v[{192+4*i}:{195+4*i}], v2, s[20:23], 0 offen offset:{16*i}")
    a("s_waitcnt vmcnt(0)")
    for i in range(4):
        a(f"ds_write_b128 v9, v[{192+4*i}:{195+4*i}] offset:{L_MEM+16*i}")
    a.label(havemem)
    a("s_waitcnt lgkmcnt(0)")
    a("s_barrier")
    w3 = a.newlabel("chain_w3")
    pj = a.newlabel("chain_pj")
    a("s_cmp_eq_u32 s38, 3")
    a(f"s_cbranch_scc1 {w3}")
    for i in range(4):
        a(f"v_mov_b32 v{192+i}, 0")
    NB = 4
    for ks in range(NB):
        a(f"ds_read_b128 v[{200+4*ks}:{203+4*ks}], v8 offset:{L_MEM+ks*64}")
    for ks in range(32):
        if ks + NB < 32:
            a(f"s_waitcnt lgkmcnt({NB-1})")
        else:
            a(f"s_waitcnt lgkmcnt({31-ks})")
        b = 200 + 4 * (ks % NB)
        w = 64 + 4 * ks
        a(f"v_mfma_f32_16x16x32_bf16 v[192:195], v[{w}:{w+3}], v[{b}:{b+3}], v[192:195]")
        if ks + NB < 32:
            a(f"ds_read_b128 v[{b}:{b+3}], v8 offset:{L_MEM+(ks+NB)*64}")
    a("s_nop 7")
    a("v_cvt_pk_bf16_f32 v196, v192, v193")
    a("v_cvt_pk_bf16_f32 v198, v194, v195")
    a("s_add_u32 s3, s40, 1")
    a("v_mov_b32 v197, s3")
    a("v_mov_b32 v199, s3")
    a("v_and_b32 v2, 8, v1")
    a("v_cmp_eq_u32 vcc, 0, v2")
    a("s_and_saveexec_b64 s[44:45], vcc")
    a("s_and_b32 s3, s40, 1")
    a("s_mul_i32 s3, s3, 0x60000")
    a("buffer_store_dwordx4 v[196:199], v11, s[16:19], s3 offen sc0 sc1")
    nokv = a.newlabel("chain_nokv")
    a("s_cmp_eq_u32 s38, 0")
    a(f"s_cbranch_scc1 {nokv}")
    a("v_mov_b32 v197, v198")
    a("s_lshl_b32 s3, s40, 16")
    kv2 = a.newlabel("chain_kv2")
    a("s_cmp_eq_u32 s38, 2")
    a(f"s_cbranch_scc1 {kv2}")
    a("buffer_store_dwordx2 v[196:197], v12, s[24:27], s3 offen")
    a(f"s_branch {nokv}")
    a.label(kv2)
    a("buffer_store_dwordx2 v[196:197], v12, s[28:31], s3 offen")
    a.label(nokv)
    a("s_mov_b64 exec, s[44:45]")
    a(f"s_branch {pj}")
    a.label(w3)
    a(f"""
    s_lshl_b32 s3, s40, 18
    s_add_u32 s4, s3, 0x{WS['Kx']:x}
    s_add_u32 s5, s3, 0x{WS['Vx']:x}
    """)
    for i in range(8):
        a(f"buffer_load_dwordx4 v[{192+4*i}:{195+4*i}], v16, s[16:19], s4 offen offset:0")
        a("s_add_u32 s4, s4, 0x8000")
    for i in range(8):
        a(f"buffer_load_dwordx4 v[{224+4*i}:{227+4*i}], v16, s[16:19], s5 offen offset:0")
        a("s_add_u32 s5, s5, 0x8000")
    a("s_waitcnt vmcnt(8)")
    for i in range(8):
        a(f"ds_write_b128 v17, v[{192+4*i}:{195+4*i}] offset:{L_K + (16+4*i)*KSTR}")
    a("s_waitcnt vmcnt(0)")
    for i in range(8):
        a(f"ds_write_b128 v18, v[{224+4*i}:{227+4*i}] offset:{L_V + (16+4*i)*VSTR}")
    a.label(pj)
    a("s_cmp_eq_u32 s40, 63")
    a(f"s_cbranch_scc1 {done}")
    g1 = a.newlabel("chain_g1")
    g1x = a.newlabel("chain_g1x")
    a("""
    s_and_b32 s3, s40, 1
    s_mul_i32 s3, s3, 0x60000
    s_add_u32 s4, s40, 1
    s_mov_b32 s42, 0
    """)
    a.label(g1)
    a(f"""
    buffer_load_dwordx4 v[192:195], v13, s[16:19], s3 offen sc0 sc1
    s_add_u32 s5, s3, 4096
    buffer_load_dwordx4 v[196:199], v13, s[16:19], s5 offen sc0 sc1
    s_add_u32 s5, s3, 8192
    buffer_load_dwordx4 v[200:203], v13, s[16:19], s5 offen sc0 sc1
    s_waitcnt vmcnt(0)
    v_cmp_ne_u32 vcc, s4, v193
    v_cmp_ne_u32 s[44:45], s4, v195
    s_or_b64 vcc, vcc, s[44:45]
    v_cmp_ne_u32 s[44:45], s4, v197
    s_or_b64 vcc, vcc, s[44:45]
    v_cmp_ne_u32 s[44:45], s4, v199
    s_or_b64 vcc, vcc, s[44:45]
    v_cmp_ne_u32 s[44:45], s4, v201
    s_or_b64 vcc, vcc, s[44:45]
    v_cmp_ne_u32 s[44:45], s4, v203
    s_or_b64 vcc, vcc, s[44:45]
    s_cbranch_vccz {g1x}
    s_add_u32 s42, s42, 1
    s_cmp_lt_u32 s42, {SPIN_LIMIT}
    s_cbranch_scc1 {g1}
    """)
    a.label(g1x)
    a(f"""
    v_mov_b32 v193, v194
    v_mov_b32 v197, v198
    v_mov_b32 v201, v202
    ds_write_b64 v14, v[192:193] offset:{L_Q}
    ds_write_b64 v14, v[196:197] offset:{L_K}
    ds_write_b64 v15, v[200:201] offset:{L_V}
    s_waitcnt lgkmcnt(0)
    s_barrier
    """)
    AS = 224
    for ks in range(4):
        a(f"ds_read_b128 v[{192+4*ks}:{195+4*ks}], v19 offset:{L_Q+ks*64}")
    for i in range(12):
        a(f"v_mov_b32 v{AS+i}, 0")
    for t in range(3):
        for ks in range(4):
            a(f"ds_read_b128 v[{208+4*ks}:{211+4*ks}], v20 offset:{L_K+t*16*KSTR+ks*64}")
        a("s_waitcnt lgkmcnt(0)")
        for ks in range(4):
            k = 208 + 4 * ks
            a(f"v_mfma_f32_16x16x32_bf16 v[{AS+4*t}:{AS+3+4*t}], v[{k}:{k+3}], v[{192+4*ks}:{195+4*ks}], v[{AS+4*t}:{AS+3+4*t}]")
        a("s_nop 7")
    a("s_nop 7")
    a("s_nop 1")
    a(f"s_mov_b32 s3, 0x{SCALE_BITS:x}")
    for i in range(12):
        r = AS + i
        a(f"v_cvt_pk_bf16_f32 v{r}, v{r}, v{r}")
        a(f"v_lshlrev_b32 v{r}, 16, v{r}")
        a(f"v_mul_f32 v{r}, s3, v{r}")
        a(f"v_cvt_pk_bf16_f32 v{r}, v{r}, v{r}")
        a(f"v_lshlrev_b32 v{r}, 16, v{r}")
    a("v_mov_b32 v192, 0xff800000")
    a("v_cmp_gt_u32 vcc, 32, v1")
    for i in range(4):
        a(f"v_cndmask_b32 v{AS+i}, v192, v{AS+i}, vcc")
    a(f"v_max3_f32 v193, v{AS}, v{AS+1}, v{AS+2}")
    for i in range(3, 11, 2):
        a(f"v_max3_f32 v193, v193, v{AS+i}, v{AS+i+1}")
    a(f"v_max_f32 v193, v193, v{AS+11}")
    a("ds_bpermute_b32 v194, v24, v193")
    a("s_waitcnt lgkmcnt(0)")
    a("v_max_f32 v193, v193, v194")
    a("ds_bpermute_b32 v194, v25, v193")
    a("s_waitcnt lgkmcnt(0)")
    a("v_max_f32 v193, v193, v194")
    a("s_mov_b32 s3, 0x3fb8aa3b")
    a("v_mul_f32 v193, s3, v193")
    a("v_mov_b32 v195, 0")
    for i in range(12):
        r = AS + i
        a(f"v_fma_f32 v{r}, v{r}, s3, -v193")
        a(f"v_exp_f32 v{r}, v{r}")
        a("s_nop 0")
        a(f"v_add_f32 v195, v195, v{r}")
    a("ds_bpermute_b32 v194, v24, v195")
    a("s_waitcnt lgkmcnt(0)")
    a("v_add_f32 v195, v195, v194")
    a("ds_bpermute_b32 v194, v25, v195")
    a("s_waitcnt lgkmcnt(0)")
    a("v_add_f32 v195, v195, v194")
    a("v_rcp_f32 v195, v195")
    a("s_nop 0")
    for i in range(12):
        a(f"v_mul_f32 v{AS+i}, v{AS+i}, v195")
    for t in range(3):
        a(f"v_cvt_pk_bf16_f32 v{196+2*t}, v{AS+4*t}, v{AS+1+4*t}")
        a(f"v_cvt_pk_bf16_f32 v{197+2*t}, v{AS+2+4*t}, v{AS+3+4*t}")
    for dt in range(2):
        for t in range(3):
            a(f"ds_read_b64_tr_b16 v[{208+2*(dt*3+t)}:{209+2*(dt*3+t)}], v21 offset:{L_V + t*16*VSTR + dt*32}")
    for i in range(8):
        a(f"v_mov_b32 v{AS+i}, 0")
    a("s_waitcnt lgkmcnt(0)")
    for dt in range(2):
        for t in range(3):
            v = 208 + 2 * (dt * 3 + t)
            a(f"v_mfma_f32_16x16x16_bf16 v[{AS+4*dt}:{AS+3+4*dt}], v[{v}:{v+1}], v[{196+2*t}:{197+2*t}], v[{AS+4*dt}:{AS+3+4*dt}]")
    a("s_nop 7")
    a("s_nop 1")
    for dt in range(2):
        a(f"v_cvt_pk_bf16_f32 v{192+2*dt}, v{AS+4*dt}, v{AS+1+4*dt}")
        a(f"v_cvt_pk_bf16_f32 v{193+2*dt}, v{AS+2+4*dt}, v{AS+3+4*dt}")
        a(f"ds_write_b64 v22, v[{192+2*dt}:{193+2*dt}] offset:{L_O + dt*32}")
    a("s_waitcnt lgkmcnt(0)")
    a("s_barrier")
    for ks in range(4):
        a(f"ds_read_b128 v[{192+4*ks}:{195+4*ks}], v19 offset:{L_O+ks*64}")
    for i in range(8):
        a(f"v_mov_b32 v{AS+i}, 0")
    a("s_waitcnt lgkmcnt(0)")
    for tt in range(2):
        for ks in range(4):
            w = 32 + (tt * 4 + ks) * 4
            a(f"v_mfma_f32_16x16x32_bf16 v[{AS+4*tt}:{AS+3+4*tt}], v[{192+4*ks}:{195+4*ks}], v[{w}:{w+3}], v[{AS+4*tt}:{AS+3+4*tt}]")
    a("s_nop 7")
    a("s_nop 1")
    a(f"""
    s_add_u32 s3, s40, 1
    s_lshl_b32 s3, s3, 15
    s_add_u32 s3, s3, 0x{WS['memacc']:x}
    v_cmp_gt_u32 vcc, 32, v1
    s_and_saveexec_b64 s[44:45], vcc
    """)
    for tt in range(2):
        for r in range(4):
            a(f"buffer_atomic_add_f32 v{AS+4*tt+r}, v23, s[16:19], s3 offen offset:{tt*64}")
            if r < 3:
                a("s_add_u32 s3, s3, 4096")
        a("s_sub_u32 s3, s3, 12288")
    a("s_mov_b64 exec, s[44:45]")
    a("s_waitcnt vmcnt(0)")
    a("s_barrier")
    nocnt = a.newlabel("chain_nocnt")
    a(f"""
    s_cmp_lg_u32 s38, 0
    s_cbranch_scc1 {nocnt}
    s_add_u32 s3, s40, 1
    s_lshl_b32 s3, s3, 12
    s_lshl_b32 s4, s36, 7
    s_add_u32 s3, s3, s4
    s_add_u32 s3, s3, 0x{WS['cnt']:x}
    v_mov_b32 v2, 1
    v_mov_b32 v3, 0
    v_cmp_eq_u32 vcc, 0, v1
    s_and_saveexec_b64 s[44:45], vcc
    buffer_atomic_add v2, v3, s[16:19], s3 offen
    s_mov_b64 exec, s[44:45]
    """)
    a.label(nocnt)
    a("s_add_u32 s40, s40, 1")
    a(f"s_branch {loop}")
    a.label(done)
    a("s_endpgm")

def gen_init(a, name):
    kernel_header(a, name)
    done = a.newlabel("init_done")
    make_srd(a, 8, SLOT['ws'], WS_SIZE)
    a(f"""
    s_cmp_ge_u32 s2, 768
    s_cbranch_scc1 {done}
    s_lshl_b32 s3, s2, 12
    s_add_u32 s4, s3, 0x{WS['memacc']:x}
    s_cmp_lt_u32 s2, 512
    s_cbranch_scc1 {done}_go
    s_sub_u32 s4, s3, 0x200000
    s_add_u32 s4, s4, 0x{WS['e1']:x}
    s_cmp_lt_u32 s2, 704
    s_cbranch_scc1 {done}_go
    s_sub_u32 s4, s3, 0x2C0000
    s_add_u32 s4, s4, 0x{WS['cnt']:x}
    """)
    a.label(done + "_go")
    a("""
    v_lshlrev_b32 v1, 4, v0
    v_mov_b32 v2, 0
    v_mov_b32 v3, 0
    v_mov_b32 v4, 0
    v_mov_b32 v5, 0
    buffer_store_dwordx4 v[2:5], v1, s[8:11], s4 offen
    """)
    a.label(done)
    a("s_endpgm")
```

```python
from asmlib import *

def gen_gemm(a, name, problems):
    kernel_header(a, name)
    total = sum(p["Mt"] * p["Nt"] for p in problems)
    body = a.newlabel("gemm_body")
    start = 0
    for pi, p in enumerate(problems):
        nxt = a.newlabel("gemm_p")
        end = start + p["Mt"] * p["Nt"]
        a(f"s_cmp_ge_u32 s2, {end}")
        a(f"s_cbranch_scc1 {nxt}")
        make_srd(a, 8, SLOT[p["A"][0]], p["A"][2], p["A"][1])
        make_srd(a, 12, SLOT[p["B"][0]], p["B"][2], p["B"][1])
        make_srd(a, 16, SLOT[p["C"][0]], p["C"][2], p["C"][1])
        a(f"s_mov_b32 s20, {p['lda']*2}")
        a(f"s_mov_b32 s21, {p['ldb']*2}")
        a(f"s_mov_b32 s22, {p['ldc']*2}")
        a(f"s_mov_b32 s23, {p['nK']}")
        a(f"s_sub_u32 s3, s2, {start}")
        assert p["Mt"] == 16
        a("s_lshr_b32 s4, s3, 3")
        a("s_and_b32 s24, s4, 15")
        a("s_lshr_b32 s4, s4, 4")
        a("s_lshl_b32 s4, s4, 3")
        a("s_and_b32 s5, s3, 7")
        a("s_add_u32 s25, s4, s5")
        a("s_lshl_b32 s24, s24, 7")
        a("s_lshl_b32 s25, s25, 7")
        a(f"s_mov_b32 s29, {p['ccol']}")
        a(f"s_branch {body}")
        a.label(nxt)
        start = end
    a("s_endpgm")
    a.label(body)
    a("""
    v_and_b32 v1, 63, v0
    v_lshrrev_b32 v2, 6, v0
    s_nop 0
    v_readfirstlane_b32 s26, v2
    s_nop 3
    s_lshr_b32 s30, s26, 1
    s_and_b32 s31, s26, 1
    """)
    a("""
    v_lshrrev_b32 v2, 3, v1
    v_lshrrev_b32 v3, 4, v1
    v_and_b32 v4, 7, v1
    s_lshl_b32 s4, s26, 5
    s_add_u32 s4, s4, s24
    """)
    for ii in range(4):
        a(f"""
        v_add_u32 v5, {8*ii}, v2
        v_add_u32 v5, s4, v5
        v_mul_lo_u32 v6, v5, s20
        v_add_u32 v7, {4*(ii&1)}, v3
        v_xor_b32 v7, v7, v4
        v_lshlrev_b32 v7, 4, v7
        v_add_u32 v{10+ii}, v6, v7
        """)
    a("""
    v_bfe_u32 v5, v1, 2, 2
    v_xor_b32 v5, v5, v3
    v_lshlrev_b32 v5, 6, v5
    v_and_b32 v6, 3, v1
    v_lshlrev_b32 v6, 4, v6
    v_add_u32 v5, v5, v6
    s_lshl_b32 s5, s25, 1
    v_add_u32 v5, s5, v5
    s_lshl_b32 s4, s26, 4
    """)
    for ii in range(4):
        a(f"""
        v_add_u32 v6, {4*ii}, v3
        v_add_u32 v6, s4, v6
        v_mul_lo_u32 v6, v6, s21
        v_add_u32 v{14+ii}, v6, v5
        """)
    a("""
    v_and_b32 v5, 31, v1
    v_lshrrev_b32 v6, 5, v1
    s_lshl_b32 s4, s30, 6
    v_add_u32 v7, s4, v5
    v_lshlrev_b32 v7, 7, v7
    v_bfe_u32 v8, v5, 1, 3
    v_xor_b32 v8, v8, v6
    v_lshlrev_b32 v8, 4, v8
    v_add_u32 v20, v7, v8
    v_xor_b32 v21, 32, v20
    v_xor_b32 v22, 64, v20
    v_xor_b32 v23, 96, v20
    v_bfe_u32 v5, v1, 2, 2
    v_lshlrev_b32 v7, 11, v6
    v_lshlrev_b32 v8, 8, v5
    v_add_u32 v7, v7, v8
    v_bfe_u32 v8, v1, 4, 1
    v_lshlrev_b32 v8, 5, v8
    v_add_u32 v7, v7, v8
    v_and_b32 v8, 3, v1
    v_lshlrev_b32 v8, 3, v8
    v_add_u32 v7, v7, v8
    v_add_u32 v7, 0x4000, v7
    s_lshl_b32 s4, s31, 1
    """)
    for nt in range(2):
        a(f"""
        s_add_u32 s5, s4, {nt}
        v_xor_b32 v8, s5, v5
        v_lshlrev_b32 v8, 6, v8
        v_add_u32 v{24+nt}, v7, v8
        """)
    for i in range(64):
        a(f"v_mov_b32 v{64+i}, 0")
    a("s_mov_b32 s27, 0")
    a("s_mov_b32 s28, 0")
    a("s_lshl_b32 s32, s21, 6")
    a("s_lshl_b32 s33, s26, 12")

    def dma(par):
        for ii in range(4):
            a(f"s_add_u32 m0, s33, {par*32768 + ii*1024}")
            a("s_nop 0")
            a(f"buffer_load_dwordx4 v{10+ii}, s[8:11], s27 offen lds")
        for ii in range(4):
            a(f"s_add_u32 m0, s33, {par*32768 + 16384 + ii*1024}")
            a("s_nop 0")
            a(f"buffer_load_dwordx4 v{14+ii}, s[12:15], s28 offen lds")
        a("s_add_u32 s27, s27, 128")
        a("s_add_u32 s28, s28, s32")

    def reads(par, kk, st):
        b = 32 + st * 16
        for mt in range(2):
            a(f"ds_read_b128 v[{b+mt*4}:{b+mt*4+3}], v{20+kk} offset:{par*32768+mt*4096}")
        for nt in range(2):
            for half in range(2):
                r = b + 8 + nt * 4 + half * 2
                a(f"ds_read_b64_tr_b16 v[{r}:{r+1}], v{24+nt} offset:{par*32768+kk*4096+half*1024}")

    def compute(par):
        reads(par, 0, 0)
        for kk in range(4):
            if kk < 3:
                reads(par, kk + 1, (kk + 1) & 1)
                a("s_waitcnt lgkmcnt(6)")
            else:
                a("s_waitcnt lgkmcnt(0)")
            b = 32 + (kk & 1) * 16
            for nt in range(2):
                for mt in range(2):
                    acc = 64 + (nt * 2 + mt) * 16
                    a(f"v_mfma_f32_32x32x16_bf16 v[{acc}:{acc+15}], v[{b+8+nt*4}:{b+8+nt*4+3}], v[{b+mt*4}:{b+mt*4+3}], v[{acc}:{acc+15}]")

    loop = a.newlabel("gemm_loop")
    last = a.newlabel("gemm_last")
    join = a.newlabel("gemm_join")
    dma(0)
    a("s_mov_b32 s34, 0")
    a.label(loop)
    dma(1)
    a("s_waitcnt vmcnt(8)")
    a("s_barrier")
    compute(0)
    a("s_barrier")
    a("s_add_u32 s34, s34, 2")
    a("s_cmp_ge_u32 s34, s23")
    a(f"s_cbranch_scc1 {last}")
    dma(0)
    a("s_waitcnt vmcnt(8)")
    a(f"s_branch {join}")
    a.label(last)
    a("s_waitcnt vmcnt(0)")
    a.label(join)
    a("s_barrier")
    compute(1)
    a("s_barrier")
    a("s_cmp_lt_u32 s34, s23")
    a(f"s_cbranch_scc1 {loop}")
    a("s_nop 15")
    a("""
    v_and_b32 v2, 31, v1
    s_lshl_b32 s4, s30, 6
    s_add_u32 s4, s4, s24
    v_add_u32 v2, s4, v2
    v_mul_lo_u32 v2, v2, s22
    v_lshrrev_b32 v3, 5, v1
    v_lshlrev_b32 v3, 3, v3
    s_lshl_b32 s4, s31, 6
    s_add_u32 s4, s4, s25
    s_add_u32 s4, s4, s29
    s_lshl_b32 s4, s4, 1
    v_add_u32 v3, s4, v3
    v_add_u32 v2, v2, v3
    s_lshl_b32 s5, s22, 5
    v_add_u32 v3, s5, v2
    """)
    t = 32
    for nt in range(2):
        for mt in range(2):
            acc = 64 + (nt * 2 + mt) * 16
            for jj in range(4):
                a(f"v_cvt_pk_bf16_f32 v{t}, v{acc+4*jj}, v{acc+4*jj+1}")
                a(f"v_cvt_pk_bf16_f32 v{t+1}, v{acc+4*jj+2}, v{acc+4*jj+3}")
                a(f"buffer_store_dwordx2 v[{t}:{t+1}], v{2+mt}, s[16:19], 0 offen offset:{nt*64+jj*16}")
                t += 2
                if t >= 64: t = 32
    a("s_endpgm")
    return total
```

```python
import sys
from asmlib import *
from gemm import gen_gemm
from chain import *
from attn_a import *
from attn_b import *
a = Asm()
probs1 = [
  dict(A=("A_x",0,2048*1024*2), lda=1024, B=("A_wqkv",0,1024*3072*2), ldb=3072, C=("ws",WS["qkvA"],2048*3072*2), ldc=3072, ccol=0, Mt=16, Nt=24, nK=16),
  dict(A=("B_x",0,2048*1024*2), lda=1024, B=("B_Wq",0,1024*4096*2), ldb=4096, C=("ws",WS["Qx"],2048*4096*2), ldc=4096, ccol=0, Mt=16, Nt=32, nK=16),
  dict(A=("B_x",0,2048*1024*2), lda=1024, B=("B_Wk",0,1024*4096*2), ldb=4096, C=("ws",WS["Kx"],2048*4096*2), ldc=4096, ccol=0, Mt=16, Nt=32, nK=16),
  dict(A=("B_x",0,2048*1024*2), lda=1024, B=("B_Wv",0,1024*4096*2), ldb=4096, C=("ws",WS["Vx"],2048*4096*2), ldc=4096, ccol=0, Mt=16, Nt=32, nK=16),
]
probs2 = [
  dict(A=("ws",WS["oA"],2048*1024*2), lda=1024, B=("A_wo",0,1024*1024*2), ldb=1024, C=("out",0,2048*2048*2), ldc=2048, ccol=0, Mt=16, Nt=8, nK=16),
  dict(A=("ws",WS["oB"],2048*4096*2), lda=4096, B=("B_Wo",0,4096*1024*2), ldb=1024, C=("out",0,2048*2048*2), ldc=2048, ccol=1024, Mt=16, Nt=8, nK=64),
]
t1 = gen_gemm(a, "gemm1_kernel", probs1)
t2 = gen_gemm(a, "gemm2_kernel", probs2)
gen_init(a, "init_kernel")
gen_chain(a, "chain_kernel")
gen_attn_a(a, "attna_kernel")
gen_attn_b(a, "attnb_kernel")
launches = [
  ("init_kernel", 1216, 0), ("gemm1_kernel", t1, 65536), ("attna_kernel", 512, A2_LDS),
  ("chain_kernel", 256, CHAIN_LDS), ("attnb_kernel", 512, B3_LDS), ("gemm2_kernel", t2, 65536)]
src = open("concat_heads__sliding_block__memory_aug_recurrent_mem_tr__prompt.s.ref").read()
head = src[:src.index("; Override launch geometry")]
hdr = head + "".join(f"; @launch kernel={k} grid=({g},1,1) block=(256,1,1) lds={l}\n" for k, g, l in launches)
descs = [("gemm1_kernel",128),("gemm2_kernel",128),("init_kernel",8),("chain_kernel",256),("attna_kernel",224),("attnb_kernel",136)]
out = hdr + '.amdgcn_target "amdgcn-amd-amdhsa--gfx950"\n.text\n' + a.text() + '.section .rodata,"a"\n' + "".join(".p2align 6\n" + descriptor(n, v) for n, v in descs)
dst = sys.argv[1] if len(sys.argv) > 1 else "concat_heads__sliding_block__memory_aug_recurrent_mem_tr__prompt.s"
open(dst, "w").write(out)
print("written", dst, len(out))
```

```python
from asmlib import *

L_MEM = 0x0
MEMSTR = 2064
L_K = 0x5000
KSTR = 272
L_V = 0x8400
VSTR = 288
L_Q = 0xBC00
L_O = 0xC800
L_WO = 0x18000
CHAIN_LDS = 0x20000
SCALE_BITS = 0x3DB504F3
SPIN_LIMIT = 1 << 22

def gen_chain(a, name):
    kernel_header(a, name)
    done = a.newlabel("chain_done")
    a("s_cmp_ge_u32 s2, 256")
    a(f"s_cbranch_scc1 {done}")
    a("""
    s_and_b32 s3, s2, 7
    s_lshr_b32 s4, s2, 3
    s_lshr_b32 s5, s4, 3
    s_lshl_b32 s3, s3, 2
    s_add_u32 s36, s3, s5
    s_and_b32 s37, s4, 7
    v_and_b32 v1, 63, v0
    v_lshrrev_b32 v2, 6, v0
    s_nop 0
    v_readfirstlane_b32 s38, v2
    s_nop 3
    """)
    a(f"""
    s_load_dwordx2 s[8:9], s[0:1], {SLOT['B_Wq']}
    s_load_dwordx2 s[12:13], s[0:1], {SLOT['B_Wk']}
    s_load_dwordx2 s[16:17], s[0:1], {SLOT['B_Wv']}
    s_waitcnt lgkmcnt(0)
    s_cmp_eq_u32 s38, 1
    s_cselect_b32 s8, s12, s8
    s_cselect_b32 s9, s13, s9
    s_cmp_eq_u32 s38, 2
    s_cselect_b32 s8, s16, s8
    s_cselect_b32 s9, s17, s9
    s_mov_b32 s10, 0x800000
    s_mov_b32 s11, 0x00020000
    """)
    make_srd(a, 12, SLOT['B_Wo'], 0x800000)
    make_srd(a, 16, SLOT['ws'], WS_SIZE)
    make_srd(a, 20, SLOT['B_mem0'], 8*1024*2)
    make_srd(a, 24, SLOT['ws'], 0x400000, WS['kmem'])
    make_srd(a, 28, SLOT['ws'], 0x400000, WS['vmem'])
    nowp = a.newlabel("chain_nowp")
    a(f"""
    s_cmp_eq_u32 s38, 3
    s_cbranch_scc1 {nowp}
    v_lshrrev_b32 v2, 1, v1
    v_lshlrev_b32 v2, 13, v2
    v_and_b32 v3, 1, v1
    v_lshlrev_b32 v3, 4, v3
    v_add_u32 v2, v2, v3
    s_lshl_b32 s3, s36, 8
    s_lshl_b32 s4, s37, 5
    s_add_u32 s3, s3, s4
    v_add_u32 v2, s3, v2
    s_lshl_b32 s4, s38, 15
    s_mov_b32 s5, 0
    """)
    for i in range(32):
        a(f"s_add_u32 m0, s4, {i*1024}")
        a("s_nop 0")
        a("buffer_load_dwordx4 v2, s[8:11], s5 offen lds")
        a("s_add_u32 s5, s5, 0x40000")
    a.label(nowp)
    a(f"""
    v_lshrrev_b32 v2, 2, v1
    v_lshlrev_b32 v2, 11, v2
    v_and_b32 v3, 3, v1
    v_lshlrev_b32 v3, 4, v3
    v_add_u32 v2, v2, v3
    s_lshl_b32 s3, s36, 18
    s_lshl_b32 s4, s37, 8
    s_add_u32 s3, s3, s4
    s_lshl_b32 s4, s38, 6
    s_add_u32 s3, s3, s4
    v_add_u32 v2, s3, v2
    s_lshl_b32 s4, s38, 13
    s_add_u32 s4, s4, {L_WO}
    s_mov_b32 s5, 0
    """)
    for i in range(8):
        a(f"s_add_u32 m0, s4, {i*1024}")
        a("s_nop 0")
        a("buffer_load_dwordx4 v2, s[12:15], s5 offen lds")
        a("s_add_u32 s5, s5, 0x8000")
    a("s_waitcnt vmcnt(0)")
    a("""
    v_lshrrev_b32 v2, 4, v1
    v_bfe_u32 v3, v1, 2, 2
    v_and_b32 v4, 3, v1
    v_lshlrev_b32 v5, 3, v2
    v_add_u32 v5, v5, v3
    """)
    a(f"""
    v_lshlrev_b32 v6, 6, v5
    v_lshlrev_b32 v7, 3, v4
    v_add_u32 v6, v6, v7
    s_lshl_b32 s4, s38, 13
    s_add_u32 s4, s4, {L_WO}
    v_add_u32 v6, s4, v6
    """)
    for tile in range(2):
        for ks in range(4):
            for part in range(2):
                r = 32 + (tile * 4 + ks) * 4 + part * 2
                a(f"ds_read_b64_tr_b16 v[{r}:{r+1}], v6 offset:{ks*2048 + part*256 + tile*32}")
    nowr = a.newlabel("chain_nowr")
    a(f"""
    s_cmp_eq_u32 s38, 3
    s_cbranch_scc1 {nowr}
    v_lshlrev_b32 v6, 5, v5
    v_lshlrev_b32 v7, 3, v4
    v_add_u32 v6, v6, v7
    s_lshl_b32 s4, s38, 15
    v_add_u32 v6, s4, v6
    """)
    for ks in range(32):
        for part in range(2):
            r = 64 + ks * 4 + part * 2
            a(f"ds_read_b64_tr_b16 v[{r}:{r+1}], v6 offset:{ks*1024 + part*128}")
    a.label(nowr)
    a("s_waitcnt lgkmcnt(0)")
    a("s_barrier")
    a(f"""
    v_mov_b32 v2, 0
    v_mov_b32 v3, 0
    v_mov_b32 v4, 0
    v_mov_b32 v5, 0
    v_lshlrev_b32 v6, 4, v0
    v_cmp_gt_u32 vcc, 144, v0
    s_and_saveexec_b64 s[40:41], vcc
    ds_write_b128 v6, v[2:5] offset:{L_V + 8*VSTR}
    ds_write_b128 v6, v[2:5] offset:{L_K + 8*KSTR}
    s_mov_b64 exec, s[40:41]
    """)
    a(f"""
    v_and_b32 v2, 7, v1
    v_mul_u32_u24 v8, {MEMSTR}, v2
    v_lshrrev_b32 v3, 4, v1
    v_lshlrev_b32 v4, 4, v3
    v_add_u32 v8, v8, v4
    """)
    a(f"""
    v_lshrrev_b32 v2, 5, v0
    v_mul_u32_u24 v9, {MEMSTR}, v2
    v_and_b32 v3, 31, v0
    v_lshlrev_b32 v4, 6, v3
    v_add_u32 v9, v9, v4
    v_lshlrev_b32 v10, 12, v2
    v_lshlrev_b32 v4, 7, v3
    v_add_u32 v10, v10, v4
    """)
    a(f"""
    v_lshrrev_b32 v2, 4, v1
    v_lshlrev_b32 v2, 3, v2
    v_and_b32 v3, 7, v1
    v_add_u32 v2, v2, v3
    v_lshlrev_b32 v11, 4, v2
    s_lshl_b32 s3, s38, 3
    s_add_u32 s3, s3, s37
    s_lshl_b32 s3, s3, 9
    s_mul_i32 s4, s36, 12288
    s_add_u32 s3, s3, s4
    s_add_u32 s3, s3, 0x{WS['e1']:x}
    v_add_u32 v11, s3, v11
    """)
    a(f"""
    v_and_b32 v2, 7, v1
    v_lshlrev_b32 v12, 13, v2
    v_lshrrev_b32 v3, 4, v1
    v_lshlrev_b32 v3, 3, v3
    v_add_u32 v12, v12, v3
    s_lshl_b32 s3, s36, 8
    s_lshl_b32 s4, s37, 5
    s_add_u32 s3, s3, s4
    v_add_u32 v12, s3, v12
    """)
    a(f"""
    v_lshlrev_b32 v13, 4, v0
    s_mul_i32 s4, s36, 12288
    s_add_u32 s4, s4, 0x{WS['e1']:x}
    v_add_u32 v13, s4, v13
    """)
    a(f"""
    v_and_b32 v2, 7, v0
    v_mul_u32_u24 v14, {KSTR}, v2
    v_lshrrev_b32 v3, 5, v0
    v_lshlrev_b32 v3, 5, v3
    v_add_u32 v14, v14, v3
    v_bfe_u32 v3, v0, 3, 2
    v_lshlrev_b32 v3, 3, v3
    v_add_u32 v14, v14, v3
    v_mul_u32_u24 v15, {VSTR}, v2
    v_lshrrev_b32 v3, 5, v0
    v_lshlrev_b32 v3, 5, v3
    v_add_u32 v15, v15, v3
    v_bfe_u32 v3, v0, 3, 2
    v_lshlrev_b32 v3, 3, v3
    v_add_u32 v15, v15, v3
    """)
    a(f"""
    v_lshrrev_b32 v2, 4, v1
    v_lshlrev_b32 v16, 13, v2
    v_and_b32 v3, 15, v1
    v_lshlrev_b32 v4, 4, v3
    v_add_u32 v16, v16, v4
    s_lshl_b32 s3, s36, 8
    v_add_u32 v16, s3, v16
    v_mul_u32_u24 v17, {KSTR}, v2
    v_add_u32 v17, v17, v4
    v_mul_u32_u24 v18, {VSTR}, v2
    v_add_u32 v18, v18, v4
    """)
    a(f"""
    v_and_b32 v2, 7, v1
    v_mul_u32_u24 v19, {KSTR}, v2
    v_lshrrev_b32 v3, 4, v1
    v_lshlrev_b32 v4, 4, v3
    v_add_u32 v19, v19, v4
    v_and_b32 v2, 15, v1
    v_mul_u32_u24 v20, {KSTR}, v2
    v_add_u32 v20, v20, v4
    """)
    a(f"""
    v_lshrrev_b32 v2, 4, v1
    v_lshlrev_b32 v2, 2, v2
    v_bfe_u32 v3, v1, 2, 2
    v_add_u32 v2, v2, v3
    v_mul_u32_u24 v21, {VSTR}, v2
    v_and_b32 v3, 3, v1
    v_lshlrev_b32 v3, 3, v3
    v_add_u32 v21, v21, v3
    s_lshl_b32 s3, s38, 6
    v_add_u32 v21, s3, v21
    """)
    a(f"""
    v_and_b32 v2, 7, v1
    v_mul_u32_u24 v22, {KSTR}, v2
    v_lshrrev_b32 v3, 4, v1
    v_lshlrev_b32 v4, 3, v3
    v_add_u32 v22, v22, v4
    s_lshl_b32 s3, s38, 6
    v_add_u32 v22, s3, v22
    v_lshlrev_b32 v23, 14, v3
    v_and_b32 v2, 15, v1
    v_lshlrev_b32 v2, 2, v2
    v_add_u32 v23, v23, v2
    s_lshl_b32 s3, s37, 9
    s_lshl_b32 s4, s38, 7
    s_add_u32 s3, s3, s4
    v_add_u32 v23, s3, v23
    v_xor_b32 v2, 16, v1
    v_lshlrev_b32 v24, 2, v2
    v_xor_b32 v2, 32, v1
    v_lshlrev_b32 v25, 2, v2
    v_lshlrev_b32 v26, 7, v1
    """)
    a("s_mov_b32 s40, 0")
    loop = a.newlabel("chain_loop")
    first = a.newlabel("chain_first")
    havemem = a.newlabel("chain_havemem")
    a.label(loop)
    a("s_cmp_eq_u32 s40, 0")
    a(f"s_cbranch_scc1 {first}")
    poll = a.newlabel("chain_poll")
    pollx = a.newlabel("chain_pollx")
    a(f"""
    s_cmp_lg_u32 s38, 0
    s_cbranch_scc1 {pollx}
    s_lshl_b32 s3, s40, 15
    s_add_u32 s3, s3, 0x{WS['cnt']:x}
    s_lshr_b32 s4, s2, 3
    s_and_b32 s4, s4, 31
    s_lshl_b32 s4, s4, 10
    s_add_u32 s3, s3, s4
    s_mov_b32 s42, 0
    v_cmp_gt_u32 vcc, {NSHARD}, v1
    s_and_saveexec_b64 s[44:45], vcc
    """)
    a.label(poll)
    a(f"""
    buffer_load_dword v192, v26, s[16:19], s3 offen sc1
    s_waitcnt vmcnt(0)
    v_cmp_ne_u32 vcc, {256//NSHARD}, v192
    s_cbranch_vccz {pollx}_r
    s_sleep 1
    s_add_u32 s42, s42, 1
    s_cmp_lt_u32 s42, {SPIN_LIMIT}
    s_cbranch_scc1 {poll}
    """)
    a.label(pollx + "_r")
    a("s_mov_b64 exec, s[44:45]")
    a.label(pollx)
    a("s_barrier")
    a(f"""
    s_lshl_b32 s3, s40, 15
    s_add_u32 s3, s3, 0x{WS['memacc']:x}
    """)
    for i in range(8):
        a(f"buffer_load_dwordx4 v[{192+4*i}:{195+4*i}], v10, s[16:19], s3 offen offset:{16*i}")
    a("s_waitcnt vmcnt(0)")
    for i in range(16):
        a(f"v_cvt_pk_bf16_f32 v{192+i}, v{192+2*i}, v{193+2*i}")
    for i in range(4):
        a(f"ds_write_b128 v9, v[{192+4*i}:{195+4*i}] offset:{L_MEM+16*i}")
    a(f"s_branch {havemem}")
    a.label(first)
    a("v_lshrrev_b32 v2, 5, v0")
    a("v_lshlrev_b32 v2, 11, v2")
    a("v_and_b32 v3, 31, v0")
    a("v_lshlrev_b32 v3, 6, v3")
    a("v_add_u32 v2, v2, v3")
    for i in range(4):
        a(f"buffer_load_dwordx4 v[{192+4*i}:{195+4*i}], v2, s[20:23], 0 offen offset:{16*i}")
    a("s_waitcnt vmcnt(0)")
    for i in range(4):
        a(f"ds_write_b128 v9, v[{192+4*i}:{195+4*i}] offset:{L_MEM+16*i}")
    a.label(havemem)
    a("s_waitcnt lgkmcnt(0)")
    a("s_barrier")
    w3 = a.newlabel("chain_w3")
    pj = a.newlabel("chain_pj")
    a("s_cmp_eq_u32 s38, 3")
    a(f"s_cbranch_scc1 {w3}")
    for i in range(4):
        a(f"v_mov_b32 v{192+i}, 0")
    NB = 4
    for ks in range(NB):
        a(f"ds_read_b128 v[{200+4*ks}:{203+4*ks}], v8 offset:{L_MEM+ks*64}")
    for ks in range(32):
        if ks + NB < 32:
            a(f"s_waitcnt lgkmcnt({NB-1})")
        else:
            a(f"s_waitcnt lgkmcnt({31-ks})")
        b = 200 + 4 * (ks % NB)
        w = 64 + 4 * ks
        a(f"v_mfma_f32_16x16x32_bf16 v[192:195], v[{w}:{w+3}], v[{b}:{b+3}], v[192:195]")
        if ks + NB < 32:
            a(f"ds_read_b128 v[{b}:{b+3}], v8 offset:{L_MEM+(ks+NB)*64}")
    a("s_nop 7")
    a("v_cvt_pk_bf16_f32 v196, v192, v193")
    a("v_cvt_pk_bf16_f32 v198, v194, v195")
    a("s_add_u32 s3, s40, 1")
    a("v_mov_b32 v197, s3")
    a("v_mov_b32 v199, s3")
    a("v_and_b32 v2, 8, v1")
    a("v_cmp_eq_u32 vcc, 0, v2")
    a("s_and_saveexec_b64 s[44:45], vcc")
    a("s_and_b32 s3, s40, 1")
    a("s_mul_i32 s3, s3, 0x60000")
    a("buffer_store_dwordx4 v[196:199], v11, s[16:19], s3 offen sc1")
    nokv = a.newlabel("chain_nokv")
    a("s_cmp_eq_u32 s38, 0")
    a(f"s_cbranch_scc1 {nokv}")
    a("v_mov_b32 v197, v198")
    a("s_lshl_b32 s3, s40, 16")
    kv2 = a.newlabel("chain_kv2")
    a("s_cmp_eq_u32 s38, 2")
    a(f"s_cbranch_scc1 {kv2}")
    a("buffer_store_dwordx2 v[196:197], v12, s[24:27], s3 offen")
    a(f"s_branch {nokv}")
    a.label(kv2)
    a("buffer_store_dwordx2 v[196:197], v12, s[28:31], s3 offen")
    a.label(nokv)
    a("s_mov_b64 exec, s[44:45]")
    a(f"s_branch {pj}")
    a.label(w3)
    a(f"""
    s_lshl_b32 s3, s40, 18
    s_add_u32 s4, s3, 0x{WS['Kx']:x}
    s_add_u32 s5, s3, 0x{WS['Vx']:x}
    """)
    for i in range(8):
        a(f"buffer_load_dwordx4 v[{192+4*i}:{195+4*i}], v16, s[16:19], s4 offen offset:0")
        a("s_add_u32 s4, s4, 0x8000")
    for i in range(8):
        a(f"buffer_load_dwordx4 v[{224+4*i}:{227+4*i}], v16, s[16:19], s5 offen offset:0")
        a("s_add_u32 s5, s5, 0x8000")
    a("s_waitcnt vmcnt(8)")
    for i in range(8):
        a(f"ds_write_b128 v17, v[{192+4*i}:{195+4*i}] offset:{L_K + (16+4*i)*KSTR}")
    a("s_waitcnt vmcnt(0)")
    for i in range(8):
        a(f"ds_write_b128 v18, v[{224+4*i}:{227+4*i}] offset:{L_V + (16+4*i)*VSTR}")
    a.label(pj)
    a("s_cmp_eq_u32 s40, 63")
    a(f"s_cbranch_scc1 {done}")
    g1 = a.newlabel("chain_g1")
    g1x = a.newlabel("chain_g1x")
    a("""
    s_and_b32 s3, s40, 1
    s_mul_i32 s3, s3, 0x60000
    s_add_u32 s4, s40, 1
    s_mov_b32 s42, 0
    """)
    a.label(g1)
    a(f"""
    buffer_load_dwordx4 v[192:195], v13, s[16:19], s3 offen sc1
    s_add_u32 s5, s3, 4096
    buffer_load_dwordx4 v[196:199], v13, s[16:19], s5 offen sc1
    s_add_u32 s5, s3, 8192
    buffer_load_dwordx4 v[200:203], v13, s[16:19], s5 offen sc1
    s_waitcnt vmcnt(0)
    v_cmp_ne_u32 vcc, s4, v193
    v_cmp_ne_u32 s[44:45], s4, v195
    s_or_b64 vcc, vcc, s[44:45]
    v_cmp_ne_u32 s[44:45], s4, v197
    s_or_b64 vcc, vcc, s[44:45]
    v_cmp_ne_u32 s[44:45], s4, v199
    s_or_b64 vcc, vcc, s[44:45]
    v_cmp_ne_u32 s[44:45], s4, v201
    s_or_b64 vcc, vcc, s[44:45]
    v_cmp_ne_u32 s[44:45], s4, v203
    s_or_b64 vcc, vcc, s[44:45]
    s_cbranch_vccz {g1x}
    s_add_u32 s42, s42, 1
    s_cmp_lt_u32 s42, {SPIN_LIMIT}
    s_cbranch_scc1 {g1}
    """)
    a.label(g1x)
    a(f"""
    v_mov_b32 v193, v194
    v_mov_b32 v197, v198
    v_mov_b32 v201, v202
    ds_write_b64 v14, v[192:193] offset:{L_Q}
    ds_write_b64 v14, v[196:197] offset:{L_K}
    ds_write_b64 v15, v[200:201] offset:{L_V}
    s_waitcnt lgkmcnt(0)
    s_barrier
    """)
    AS = 224
    for ks in range(4):
        a(f"ds_read_b128 v[{192+4*ks}:{195+4*ks}], v19 offset:{L_Q+ks*64}")
    for i in range(12):
        a(f"v_mov_b32 v{AS+i}, 0")
    for t in range(3):
        for ks in range(4):
            a(f"ds_read_b128 v[{208+4*ks}:{211+4*ks}], v20 offset:{L_K+t*16*KSTR+ks*64}")
        a("s_waitcnt lgkmcnt(0)")
        for ks in range(4):
            k = 208 + 4 * ks
            a(f"v_mfma_f32_16x16x32_bf16 v[{AS+4*t}:{AS+3+4*t}], v[{k}:{k+3}], v[{192+4*ks}:{195+4*ks}], v[{AS+4*t}:{AS+3+4*t}]")
        a("s_nop 7")
    a("s_nop 7")
    a("s_nop 1")
    a(f"s_mov_b32 s3, 0x{SCALE_BITS:x}")
    for i in range(12):
        r = AS + i
        a(f"v_cvt_pk_bf16_f32 v{r}, v{r}, v{r}")
        a(f"v_lshlrev_b32 v{r}, 16, v{r}")
        a(f"v_mul_f32 v{r}, s3, v{r}")
        a(f"v_cvt_pk_bf16_f32 v{r}, v{r}, v{r}")
        a(f"v_lshlrev_b32 v{r}, 16, v{r}")
    a("v_mov_b32 v192, 0xff800000")
    a("v_cmp_gt_u32 vcc, 32, v1")
    for i in range(4):
        a(f"v_cndmask_b32 v{AS+i}, v192, v{AS+i}, vcc")
    a(f"v_max3_f32 v193, v{AS}, v{AS+1}, v{AS+2}")
    for i in range(3, 11, 2):
        a(f"v_max3_f32 v193, v193, v{AS+i}, v{AS+i+1}")
    a(f"v_max_f32 v193, v193, v{AS+11}")
    a("ds_bpermute_b32 v194, v24, v193")
    a("s_waitcnt lgkmcnt(0)")
    a("v_max_f32 v193, v193, v194")
    a("ds_bpermute_b32 v194, v25, v193")
    a("s_waitcnt lgkmcnt(0)")
    a("v_max_f32 v193, v193, v194")
    a("s_mov_b32 s3, 0x3fb8aa3b")
    a("v_mul_f32 v193, s3, v193")
    a("v_mov_b32 v195, 0")
    for i in range(12):
        r = AS + i
        a(f"v_fma_f32 v{r}, v{r}, s3, -v193")
        a(f"v_exp_f32 v{r}, v{r}")
        a("s_nop 0")
        a(f"v_add_f32 v195, v195, v{r}")
    a("ds_bpermute_b32 v194, v24, v195")
    a("s_waitcnt lgkmcnt(0)")
    a("v_add_f32 v195, v195, v194")
    a("ds_bpermute_b32 v194, v25, v195")
    a("s_waitcnt lgkmcnt(0)")
    a("v_add_f32 v195, v195, v194")
    a("v_rcp_f32 v195, v195")
    a("s_nop 0")
    for i in range(12):
        a(f"v_mul_f32 v{AS+i}, v{AS+i}, v195")
    for t in range(3):
        a(f"v_cvt_pk_bf16_f32 v{196+2*t}, v{AS+4*t}, v{AS+1+4*t}")
        a(f"v_cvt_pk_bf16_f32 v{197+2*t}, v{AS+2+4*t}, v{AS+3+4*t}")
    for dt in range(2):
        for t in range(3):
            a(f"ds_read_b64_tr_b16 v[{208+2*(dt*3+t)}:{209+2*(dt*3+t)}], v21 offset:{L_V + t*16*VSTR + dt*32}")
    for i in range(8):
        a(f"v_mov_b32 v{AS+i}, 0")
    a("s_waitcnt lgkmcnt(0)")
    for dt in range(2):
        for t in range(3):
            v = 208 + 2 * (dt * 3 + t)
            a(f"v_mfma_f32_16x16x16_bf16 v[{AS+4*dt}:{AS+3+4*dt}], v[{v}:{v+1}], v[{196+2*t}:{197+2*t}], v[{AS+4*dt}:{AS+3+4*dt}]")
    a("s_nop 7")
    a("s_nop 1")
    for dt in range(2):
        a(f"v_cvt_pk_bf16_f32 v{192+2*dt}, v{AS+4*dt}, v{AS+1+4*dt}")
        a(f"v_cvt_pk_bf16_f32 v{193+2*dt}, v{AS+2+4*dt}, v{AS+3+4*dt}")
        a(f"ds_write_b64 v22, v[{192+2*dt}:{193+2*dt}] offset:{L_O + dt*32}")
    a("s_waitcnt lgkmcnt(0)")
    a("s_barrier")
    for ks in range(4):
        a(f"ds_read_b128 v[{192+4*ks}:{195+4*ks}], v19 offset:{L_O+ks*64}")
    for i in range(8):
        a(f"v_mov_b32 v{AS+i}, 0")
    a("s_waitcnt lgkmcnt(0)")
    for tt in range(2):
        for ks in range(4):
            w = 32 + (tt * 4 + ks) * 4
            a(f"v_mfma_f32_16x16x32_bf16 v[{AS+4*tt}:{AS+3+4*tt}], v[{192+4*ks}:{195+4*ks}], v[{w}:{w+3}], v[{AS+4*tt}:{AS+3+4*tt}]")
    a("s_nop 7")
    a("s_nop 1")
    a(f"""
    s_add_u32 s3, s40, 1
    s_lshl_b32 s3, s3, 15
    s_add_u32 s3, s3, 0x{WS['memacc']:x}
    v_cmp_gt_u32 vcc, 32, v1
    s_and_saveexec_b64 s[44:45], vcc
    """)
    for tt in range(2):
        for r in range(4):
            a(f"buffer_atomic_add_f32 v{AS+4*tt+r}, v23, s[16:19], s3 offen offset:{tt*64}")
            if r < 3:
                a("s_add_u32 s3, s3, 4096")
        a("s_sub_u32 s3, s3, 12288")
    a("s_mov_b64 exec, s[44:45]")
    a("s_waitcnt vmcnt(0)")
    a("s_barrier")
    nocnt = a.newlabel("chain_nocnt")
    a(f"""
    s_cmp_lg_u32 s38, 0
    s_cbranch_scc1 {nocnt}
    s_add_u32 s3, s40, 1
    s_lshl_b32 s3, s3, 15
    s_and_b32 s4, s2, {NSHARD-1}
    s_lshl_b32 s4, s4, 7
    s_add_u32 s3, s3, s4
    s_add_u32 s3, s3, 0x{WS['cnt']:x}
    v_mov_b32 v2, 1
    v_lshlrev_b32 v3, 10, v1
    v_cmp_gt_u32 vcc, 32, v1
    s_and_saveexec_b64 s[44:45], vcc
    buffer_atomic_add v2, v3, s[16:19], s3 offen
    s_mov_b64 exec, s[44:45]
    """)
    a.label(nocnt)
    a("s_add_u32 s40, s40, 1")
    a(f"s_branch {loop}")
    a.label(done)
    a("s_endpgm")

def gen_init(a, name):
    kernel_header(a, name)
    done = a.newlabel("init_done")
    make_srd(a, 8, SLOT['ws'], WS_SIZE)
    a(f"""
    s_cmp_ge_u32 s2, 1216
    s_cbranch_scc1 {done}
    s_lshl_b32 s3, s2, 12
    s_add_u32 s4, s3, 0x{WS['memacc']:x}
    s_cmp_lt_u32 s2, 512
    s_cbranch_scc1 {done}_go
    s_sub_u32 s4, s3, 0x200000
    s_add_u32 s4, s4, 0x{WS['e1']:x}
    s_cmp_lt_u32 s2, 704
    s_cbranch_scc1 {done}_go
    s_sub_u32 s4, s3, 0x2C0000
    s_add_u32 s4, s4, 0x{WS['cnt']:x}
    """)
    a.label(done + "_go")
    a("""
    v_lshlrev_b32 v1, 4, v0
    v_mov_b32 v2, 0
    v_mov_b32 v3, 0
    v_mov_b32 v4, 0
    v_mov_b32 v5, 0
    buffer_store_dwordx4 v[2:5], v1, s[8:11], s4 offen
    """)
    a.label(done)
    a("s_endpgm")
```

```python
from asmlib import *
from gemm import wait_counter, signal_counter
A2_LDS = 4 * 9 * 2048
SCALE_A = 0x3E3504F3

def gen_attn_a(a, name, header=True, wait=None, signal=None):
    if header: kernel_header(a, name)
    done = a.newlabel("aa_done")
    a(f"""
    s_cmp_ge_u32 s2, 512
    s_cbranch_scc1 {done}
    v_and_b32 v1, 63, v0
    v_lshrrev_b32 v2, 6, v0
    s_nop 0
    v_readfirstlane_b32 s38, v2
    s_nop 3
    s_lshl_b32 s3, s2, 2
    s_add_u32 s3, s3, s38
    s_lshr_b32 s36, s3, 6
    s_and_b32 s37, s3, 63
    s_lshl_b32 s37, s37, 5
    """)
    if wait: wait_counter(a, *wait)
    make_srd(a, 8, SLOT['ws'], 2048*3072*2, WS['qkvA'])
    make_srd(a, 12, SLOT['ws'], 2048*1024*2, WS['oA'])
    a("""
    v_and_b32 v2, 31, v1
    v_mul_u32_u24 v3, 6144, v2
    v_lshrrev_b32 v4, 5, v1
    v_lshlrev_b32 v5, 4, v4
    v_add_u32 v3, v3, v5
    s_lshl_b32 s3, s36, 6
    v_add_u32 v3, s3, v3
    s_mul_i32 s4, s37, 6144
    buffer_load_dwordx4 v[8:11], v3, s[8:11], s4 offen
    buffer_load_dwordx4 v[12:15], v3, s[8:11], s4 offen offset:32
    """)
    a("""
    v_lshrrev_b32 v2, 2, v1
    v_mul_u32_u24 v6, 6144, v2
    v_and_b32 v5, 3, v1
    v_lshlrev_b32 v5, 4, v5
    v_add_u32 v6, v6, v5
    s_add_u32 s3, s3, 4096
    v_add_u32 v6, s3, v6
    s_mul_i32 s33, s38, 18432
    """)
    for t in range(9):
        skip = a.newlabel("aa_sk")
        nxt = a.newlabel("aa_nx")
        acc = 64 + 16 * t
        a(f"""
        s_add_u32 s5, s37, {32*t}
        s_cmp_lt_u32 s5, 256
        s_cbranch_scc1 {skip}
        s_sub_u32 s5, s5, 256
        s_mul_i32 s4, s5, 6144
        buffer_load_dwordx4 v[16:19], v3, s[8:11], s4 offen offset:2048
        buffer_load_dwordx4 v[20:23], v3, s[8:11], s4 offen offset:2080
        s_add_u32 m0, s33, {t*2048}
        s_nop 0
        buffer_load_dwordx4 v6, s[8:11], s4 offen lds
        s_add_u32 s4, s4, {16*6144}
        s_add_u32 m0, s33, {t*2048+1024}
        s_nop 0
        buffer_load_dwordx4 v6, s[8:11], s4 offen lds
        """)
        for i in range(16):
            a(f"v_mov_b32 v{acc+i}, 0")
        a("s_waitcnt vmcnt(0)")
        a(f"v_mfma_f32_32x32x16_bf16 v[{acc}:{acc+15}], v[16:19], v[8:11], v[{acc}:{acc+15}]")
        a(f"v_mfma_f32_32x32x16_bf16 v[{acc}:{acc+15}], v[20:23], v[12:15], v[{acc}:{acc+15}]")
        a("s_nop 7")
        a(f"s_branch {nxt}")
        a.label(skip)
        for i in range(16):
            a(f"v_mov_b32 v{acc+i}, 0xff800000")
        a.label(nxt)
    a("s_nop 15")
    a(f"s_mov_b32 s3, 0x{SCALE_A:x}")
    for r in range(64, 208):
        a(f"v_cvt_pk_bf16_f32 v{r}, v{r}, v{r}")
        a(f"v_lshlrev_b32 v{r}, 16, v{r}")
        a(f"v_mul_f32 v{r}, s3, v{r}")
        a(f"v_cvt_pk_bf16_f32 v{r}, v{r}, v{r}")
        a(f"v_lshlrev_b32 v{r}, 16, v{r}")
    a("""
    v_and_b32 v2, 31, v1
    v_lshrrev_b32 v4, 5, v1
    v_lshlrev_b32 v4, 2, v4
    v_sub_u32 v2, v2, v4
    v_mov_b32 v5, 0xff800000
    """)
    for r in range(16):
        kb = 8 * (r >> 2) + (r & 3)
        a(f"v_cmp_gt_i32 vcc, {kb}, v2")
        a(f"v_cndmask_b32 v{64+r}, v5, v{64+r}, vcc")
        a(f"v_cmp_le_i32 vcc, {kb}, v2")
        a(f"v_cndmask_b32 v{192+r}, v5, v{192+r}, vcc")
    a("v_max_f32 v7, v64, v65")
    for r in range(66, 208, 2):
        a(f"v_max3_f32 v7, v7, v{r}, v{r+1}")
    a("""
    v_xor_b32 v2, 32, v1
    v_lshlrev_b32 v2, 2, v2
    ds_bpermute_b32 v4, v2, v7
    s_waitcnt lgkmcnt(0)
    v_max_f32 v7, v7, v4
    s_mov_b32 s3, 0x3fb8aa3b
    v_mul_f32 v7, s3, v7
    v_mov_b32 v5, 0
    """)
    for r in range(64, 208):
        a(f"v_fma_f32 v{r}, v{r}, s3, -v7")
        a(f"v_exp_f32 v{r}, v{r}")
        a("s_nop 0")
        a(f"v_add_f32 v5, v5, v{r}")
    a("""
    ds_bpermute_b32 v4, v2, v5
    s_waitcnt lgkmcnt(0)
    v_add_f32 v5, v5, v4
    v_rcp_f32 v5, v5
    s_nop 0
    """)
    for r in range(64, 208, 2):
        a(f"v_mul_f32 v{r}, v{r}, v5")
        a(f"v_mul_f32 v{r+1}, v{r+1}, v5")
        a(f"v_cvt_pk_bf16_f32 v{64+(r-64)//2}, v{r}, v{r+1}")
    a("""
    v_lshrrev_b32 v2, 5, v1
    v_lshlrev_b32 v2, 2, v2
    v_bfe_u32 v4, v1, 2, 2
    v_add_u32 v2, v2, v4
    v_lshlrev_b32 v6, 6, v2
    v_bfe_u32 v4, v1, 4, 1
    v_lshlrev_b32 v4, 5, v4
    v_add_u32 v6, v6, v4
    v_and_b32 v4, 3, v1
    v_lshlrev_b32 v4, 3, v4
    v_add_u32 v6, v6, v4
    v_add_u32 v6, s33, v6
    """)
    for i in range(16):
        a(f"v_mov_b32 v{208+i}, 0")
    for t in range(9):
        skip = a.newlabel("aa_pk")
        a(f"""
        s_add_u32 s5, s37, {32*t}
        s_cmp_lt_u32 s5, 256
        s_cbranch_scc1 {skip}
        """)
        for s2 in range(2):
            for part in range(2):
                a(f"ds_read_b64_tr_b16 v[{16+4*s2+2*part}:{17+4*s2+2*part}], v6 offset:{t*2048 + (16*s2+8*part)*64}")
        a("s_waitcnt lgkmcnt(0)")
        for s2 in range(2):
            p = 64 + 8 * t + 4 * s2
            a(f"v_mfma_f32_32x32x16_bf16 v[208:223], v[{16+4*s2}:{19+4*s2}], v[{p}:{p+3}], v[208:223]")
        a("s_nop 7")
        a.label(skip)
    a("s_nop 15")
    a("""
    v_and_b32 v2, 31, v1
    v_add_u32 v2, s37, v2
    v_lshlrev_b32 v2, 11, v2
    v_lshrrev_b32 v4, 5, v1
    v_lshlrev_b32 v4, 3, v4
    v_add_u32 v2, v2, v4
    s_lshl_b32 s3, s36, 6
    v_add_u32 v2, s3, v2
    """)
    for jj in range(4):
        a(f"v_cvt_pk_bf16_f32 v{16+2*jj}, v{208+4*jj}, v{209+4*jj}")
        a(f"v_cvt_pk_bf16_f32 v{17+2*jj}, v{210+4*jj}, v{211+4*jj}")
        a(f"buffer_store_dwordx2 v[{16+2*jj}:{17+2*jj}], v2, s[12:15], 0 offen offset:{jj*16}")
    if signal:
        a(f"s_mov_b32 s35, 0x{signal:x}")
        signal_counter(a, "s35")
    a.label(done)
    a("s_endpgm")
```

```python
from asmlib import *

L_MEM = 0x0
MEMSTR = 2064
L_K = 0x5000
KSTR = 272
L_V = 0x8400
VSTR = 288
L_Q = 0xBC00
L_O = 0xC800
L_WO = 0x18000
CHAIN_LDS = 73728
SCALE_BITS = 0x3DB504F3
SPIN_LIMIT = 1 << 22

def gen_chain(a, name, header=True):
    if header: kernel_header(a, name)
    a("s_setprio 3")
    done = a.newlabel("chain_done")
    a("s_cmp_ge_u32 s2, 256")
    a(f"s_cbranch_scc1 {done}")
    a("""
    s_and_b32 s3, s2, 7
    s_lshr_b32 s4, s2, 3
    s_lshr_b32 s5, s4, 3
    s_lshl_b32 s3, s3, 2
    s_add_u32 s36, s3, s5
    s_and_b32 s37, s4, 7
    v_and_b32 v1, 63, v0
    v_lshrrev_b32 v2, 6, v0
    s_nop 0
    v_readfirstlane_b32 s38, v2
    s_nop 3
    """)
    a(f"""
    s_load_dwordx2 s[8:9], s[0:1], {SLOT['B_Wq']}
    s_load_dwordx2 s[12:13], s[0:1], {SLOT['B_Wk']}
    s_load_dwordx2 s[16:17], s[0:1], {SLOT['B_Wv']}
    s_waitcnt lgkmcnt(0)
    s_cmp_eq_u32 s38, 1
    s_cselect_b32 s8, s12, s8
    s_cselect_b32 s9, s13, s9
    s_cmp_eq_u32 s38, 2
    s_cselect_b32 s8, s16, s8
    s_cselect_b32 s9, s17, s9
    s_mov_b32 s10, 0x800000
    s_mov_b32 s11, 0x00020000
    """)
    make_srd(a, 12, SLOT['B_Wo'], 0x800000)
    make_srd(a, 16, SLOT['ws'], WS_SIZE)
    make_srd(a, 20, SLOT['B_mem0'], 8*1024*2)
    make_srd(a, 24, SLOT['ws'], 0x400000, WS['kmem'])
    make_srd(a, 28, SLOT['ws'], 0x400000, WS['vmem'])
    a(f"""
    v_lshrrev_b32 v2, 2, v1
    v_lshlrev_b32 v2, 11, v2
    v_and_b32 v3, 3, v1
    v_lshlrev_b32 v3, 4, v3
    v_add_u32 v2, v2, v3
    s_lshl_b32 s3, s36, 18
    s_lshl_b32 s4, s37, 8
    s_add_u32 s3, s3, s4
    s_lshl_b32 s4, s38, 6
    s_add_u32 s3, s3, s4
    v_add_u32 v2, s3, v2
    s_lshl_b32 s4, s38, 13
    s_mov_b32 s5, 0
    """)
    for i in range(8):
        a(f"s_add_u32 m0, s4, {i*1024}")
        a("s_nop 0")
        a("buffer_load_dwordx4 v2, s[12:15], s5 offen lds")
        a("s_add_u32 s5, s5, 0x8000")
    a("s_waitcnt vmcnt(0)")
    a("""
    v_lshrrev_b32 v2, 4, v1
    v_bfe_u32 v3, v1, 2, 2
    v_and_b32 v4, 3, v1
    v_lshlrev_b32 v5, 3, v2
    v_add_u32 v5, v5, v3
    v_lshlrev_b32 v6, 6, v5
    v_lshlrev_b32 v7, 3, v4
    v_add_u32 v6, v6, v7
    s_lshl_b32 s4, s38, 13
    v_add_u32 v6, s4, v6
    """)
    for tile in range(2):
        for ks in range(4):
            for part in range(2):
                r = 32 + (tile * 4 + ks) * 4 + part * 2
                a(f"ds_read_b64_tr_b16 v[{r}:{r+1}], v6 offset:{ks*2048 + part*256 + tile*32}")
    a("s_waitcnt lgkmcnt(0)")
    a("s_barrier")
    nowp = a.newlabel("chain_nowp")
    a(f"""
    s_cmp_eq_u32 s38, 3
    s_cbranch_scc1 {nowp}
    v_lshrrev_b32 v2, 1, v1
    v_lshlrev_b32 v2, 13, v2
    v_and_b32 v3, 1, v1
    v_lshlrev_b32 v3, 4, v3
    v_add_u32 v2, v2, v3
    s_lshl_b32 s3, s36, 8
    s_lshl_b32 s4, s37, 5
    s_add_u32 s3, s3, s4
    v_add_u32 v2, s3, v2
    s_lshl_b32 s4, s38, 14
    s_mov_b32 s5, 0
    v_lshlrev_b32 v6, 5, v5
    v_lshlrev_b32 v7, 3, v4
    v_add_u32 v6, v6, v7
    v_add_u32 v6, s4, v6
    """)
    for rnd in range(2):
        for i in range(16):
            a(f"s_add_u32 m0, s4, {i*1024}")
            a("s_nop 0")
            a("buffer_load_dwordx4 v2, s[8:11], s5 offen lds")
            a("s_add_u32 s5, s5, 0x40000")
        a("s_waitcnt vmcnt(0)")
        for ks in range(16):
            for part in range(2):
                r = 64 + (rnd * 16 + ks) * 4 + part * 2
                a(f"ds_read_b64_tr_b16 v[{r}:{r+1}], v6 offset:{ks*1024 + part*128}")
        a("s_waitcnt lgkmcnt(0)")
    a.label(nowp)
    a("s_barrier")
    a(f"""
    v_mov_b32 v2, 0
    v_mov_b32 v3, 0
    v_mov_b32 v4, 0
    v_mov_b32 v5, 0
    v_lshlrev_b32 v6, 4, v0
    v_cmp_gt_u32 vcc, 144, v0
    s_and_saveexec_b64 s[40:41], vcc
    ds_write_b128 v6, v[2:5] offset:{L_V + 8*VSTR}
    ds_write_b128 v6, v[2:5] offset:{L_K + 8*KSTR}
    s_mov_b64 exec, s[40:41]
    """)
    a(f"""
    v_and_b32 v2, 7, v1
    v_mul_u32_u24 v8, {MEMSTR}, v2
    v_lshrrev_b32 v3, 4, v1
    v_lshlrev_b32 v4, 4, v3
    v_add_u32 v8, v8, v4
    """)
    a(f"""
    v_lshrrev_b32 v2, 5, v0
    v_mul_u32_u24 v9, {MEMSTR}, v2
    v_and_b32 v3, 31, v0
    v_lshlrev_b32 v4, 6, v3
    v_add_u32 v9, v9, v4
    v_lshlrev_b32 v10, 12, v2
    v_lshlrev_b32 v4, 7, v3
    v_add_u32 v10, v10, v4
    """)
    a(f"""
    v_lshrrev_b32 v2, 4, v1
    v_lshlrev_b32 v2, 3, v2
    v_and_b32 v3, 7, v1
    v_add_u32 v2, v2, v3
    v_lshlrev_b32 v11, 4, v2
    s_lshl_b32 s3, s38, 3
    s_add_u32 s3, s3, s37
    s_lshl_b32 s3, s3, 9
    s_mul_i32 s4, s36, 12288
    s_add_u32 s3, s3, s4
    s_add_u32 s3, s3, 0x{WS['e1']:x}
    v_add_u32 v11, s3, v11
    """)
    a(f"""
    v_and_b32 v2, 7, v1
    v_lshlrev_b32 v12, 13, v2
    v_lshrrev_b32 v3, 4, v1
    v_lshlrev_b32 v3, 3, v3
    v_add_u32 v12, v12, v3
    s_lshl_b32 s3, s36, 8
    s_lshl_b32 s4, s37, 5
    s_add_u32 s3, s3, s4
    v_add_u32 v12, s3, v12
    """)
    a(f"""
    v_lshlrev_b32 v13, 4, v0
    s_mul_i32 s4, s36, 12288
    s_add_u32 s4, s4, 0x{WS['e1']:x}
    v_add_u32 v13, s4, v13
    """)
    a(f"""
    v_and_b32 v2, 7, v0
    v_mul_u32_u24 v14, {KSTR}, v2
    v_lshrrev_b32 v3, 5, v0
    v_lshlrev_b32 v3, 5, v3
    v_add_u32 v14, v14, v3
    v_bfe_u32 v3, v0, 3, 2
    v_lshlrev_b32 v3, 3, v3
    v_add_u32 v14, v14, v3
    v_mul_u32_u24 v15, {VSTR}, v2
    v_lshrrev_b32 v3, 5, v0
    v_lshlrev_b32 v3, 5, v3
    v_add_u32 v15, v15, v3
    v_bfe_u32 v3, v0, 3, 2
    v_lshlrev_b32 v3, 3, v3
    v_add_u32 v15, v15, v3
    """)
    a(f"""
    v_lshrrev_b32 v2, 4, v1
    v_lshlrev_b32 v16, 13, v2
    v_and_b32 v3, 15, v1
    v_lshlrev_b32 v4, 4, v3
    v_add_u32 v16, v16, v4
    s_lshl_b32 s3, s36, 8
    v_add_u32 v16, s3, v16
    v_mul_u32_u24 v17, {KSTR}, v2
    v_add_u32 v17, v17, v4
    v_mul_u32_u24 v18, {VSTR}, v2
    v_add_u32 v18, v18, v4
    """)
    a(f"""
    v_and_b32 v2, 7, v1
    v_mul_u32_u24 v19, {KSTR}, v2
    v_lshrrev_b32 v3, 4, v1
    v_lshlrev_b32 v4, 4, v3
    v_add_u32 v19, v19, v4
    v_and_b32 v2, 15, v1
    v_mul_u32_u24 v20, {KSTR}, v2
    v_add_u32 v20, v20, v4
    """)
    a(f"""
    v_lshrrev_b32 v2, 4, v1
    v_lshlrev_b32 v2, 2, v2
    v_bfe_u32 v3, v1, 2, 2
    v_add_u32 v2, v2, v3
    v_mul_u32_u24 v21, {VSTR}, v2
    v_and_b32 v3, 3, v1
    v_lshlrev_b32 v3, 3, v3
    v_add_u32 v21, v21, v3
    s_lshl_b32 s3, s38, 6
    v_add_u32 v21, s3, v21
    """)
    a(f"""
    v_and_b32 v2, 7, v1
    v_mul_u32_u24 v22, {KSTR}, v2
    v_lshrrev_b32 v3, 4, v1
    v_lshlrev_b32 v4, 3, v3
    v_add_u32 v22, v22, v4
    s_lshl_b32 s3, s38, 6
    v_add_u32 v22, s3, v22
    v_lshlrev_b32 v23, 14, v3
    v_and_b32 v2, 15, v1
    v_lshlrev_b32 v2, 2, v2
    v_add_u32 v23, v23, v2
    s_lshl_b32 s3, s37, 9
    s_lshl_b32 s4, s38, 7
    s_add_u32 s3, s3, s4
    v_add_u32 v23, s3, v23
    v_xor_b32 v2, 16, v1
    v_lshlrev_b32 v24, 2, v2
    v_xor_b32 v2, 32, v1
    v_lshlrev_b32 v25, 2, v2
    v_lshlrev_b32 v26, 7, v1
    """)
    a("s_mov_b32 s40, 0")
    loop = a.newlabel("chain_loop")
    first = a.newlabel("chain_first")
    havemem = a.newlabel("chain_havemem")
    a.label(loop)
    a("s_cmp_eq_u32 s40, 0")
    a(f"s_cbranch_scc1 {first}")
    poll = a.newlabel("chain_poll")
    pollx = a.newlabel("chain_pollx")
    a(f"""
    s_cmp_lg_u32 s38, 0
    s_cbranch_scc1 {pollx}
    s_lshl_b32 s3, s40, 15
    s_add_u32 s3, s3, 0x{WS['cnt']:x}
    s_lshr_b32 s4, s2, 3
    s_and_b32 s4, s4, 31
    s_lshl_b32 s4, s4, 10
    s_add_u32 s3, s3, s4
    s_mov_b32 s42, 0
    v_cmp_gt_u32 vcc, {NSHARD}, v1
    s_and_saveexec_b64 s[44:45], vcc
    """)
    a.label(poll)
    a(f"""
    buffer_load_dword v192, v26, s[16:19], s3 offen sc1
    s_waitcnt vmcnt(0)
    v_cmp_ne_u32 vcc, {256//NSHARD}, v192
    s_cbranch_vccz {pollx}_r
    s_sleep 1
    s_add_u32 s42, s42, 1
    s_cmp_lt_u32 s42, {SPIN_LIMIT}
    s_cbranch_scc1 {poll}
    """)
    a.label(pollx + "_r")
    a("s_mov_b64 exec, s[44:45]")
    a.label(pollx)
    a("s_barrier")
    a(f"""
    s_lshl_b32 s3, s40, 15
    s_add_u32 s3, s3, 0x{WS['memacc']:x}
    """)
    for i in range(8):
        a(f"buffer_load_dwordx4 v[{192+4*i}:{195+4*i}], v10, s[16:19], s3 offen offset:{16*i}")
    a("s_waitcnt vmcnt(0)")
    for i in range(16):
        a(f"v_cvt_pk_bf16_f32 v{192+i}, v{192+2*i}, v{193+2*i}")
    for i in range(4):
        a(f"ds_write_b128 v9, v[{192+4*i}:{195+4*i}] offset:{L_MEM+16*i}")
    a(f"s_branch {havemem}")
    a.label(first)
    a("v_lshrrev_b32 v2, 5, v0")
    a("v_lshlrev_b32 v2, 11, v2")
    a("v_and_b32 v3, 31, v0")
    a("v_lshlrev_b32 v3, 6, v3")
    a("v_add_u32 v2, v2, v3")
    for i in range(4):
        a(f"buffer_load_dwordx4 v[{192+4*i}:{195+4*i}], v2, s[20:23], 0 offen offset:{16*i}")
    a("s_waitcnt vmcnt(0)")
    for i in range(4):
        a(f"ds_write_b128 v9, v[{192+4*i}:{195+4*i}] offset:{L_MEM+16*i}")
    a.label(havemem)
    a("s_waitcnt lgkmcnt(0)")
    a("s_barrier")
    w3 = a.newlabel("chain_w3")
    pj = a.newlabel("chain_pj")
    a("s_cmp_eq_u32 s38, 3")
    a(f"s_cbranch_scc1 {w3}")
    for i in range(4):
        a(f"v_mov_b32 v{192+i}, 0")
    NB = 4
    for ks in range(NB):
        a(f"ds_read_b128 v[{200+4*ks}:{203+4*ks}], v8 offset:{L_MEM+ks*64}")
    for ks in range(32):
        if ks + NB < 32:
            a(f"s_waitcnt lgkmcnt({NB-1})")
        else:
            a(f"s_waitcnt lgkmcnt({31-ks})")
        b = 200 + 4 * (ks % NB)
        w = 64 + 4 * ks
        a(f"v_mfma_f32_16x16x32_bf16 v[192:195], v[{w}:{w+3}], v[{b}:{b+3}], v[192:195]")
        if ks + NB < 32:
            a(f"ds_read_b128 v[{b}:{b+3}], v8 offset:{L_MEM+(ks+NB)*64}")
    a("s_nop 7")
    a("v_cvt_pk_bf16_f32 v196, v192, v193")
    a("v_cvt_pk_bf16_f32 v198, v194, v195")
    a("s_add_u32 s3, s40, 1")
    a("v_mov_b32 v197, s3")
    a("v_mov_b32 v199, s3")
    a("v_and_b32 v2, 8, v1")
    a("v_cmp_eq_u32 vcc, 0, v2")
    a("s_and_saveexec_b64 s[44:45], vcc")
    a("s_and_b32 s3, s40, 1")
    a("s_mul_i32 s3, s3, 0x60000")
    a("buffer_store_dwordx4 v[196:199], v11, s[16:19], s3 offen sc1")
    nokv = a.newlabel("chain_nokv")
    a("s_cmp_eq_u32 s38, 0")
    a(f"s_cbranch_scc1 {nokv}")
    a("v_mov_b32 v197, v198")
    a("s_lshl_b32 s3, s40, 16")
    kv2 = a.newlabel("chain_kv2")
    a("s_cmp_eq_u32 s38, 2")
    a(f"s_cbranch_scc1 {kv2}")
    a("buffer_store_dwordx2 v[196:197], v12, s[24:27], s3 offen")
    a(f"s_branch {nokv}")
    a.label(kv2)
    a("buffer_store_dwordx2 v[196:197], v12, s[28:31], s3 offen")
    a.label(nokv)
    a("s_mov_b64 exec, s[44:45]")
    a(f"s_branch {pj}")
    a.label(w3)
    a(f"""
    s_lshl_b32 s3, s40, 18
    s_add_u32 s4, s3, 0x{WS['Kx']:x}
    s_add_u32 s5, s3, 0x{WS['Vx']:x}
    """)
    for i in range(8):
        a(f"buffer_load_dwordx4 v[{192+4*i}:{195+4*i}], v16, s[16:19], s4 offen offset:0")
        a("s_add_u32 s4, s4, 0x8000")
    for i in range(8):
        a(f"buffer_load_dwordx4 v[{224+4*i}:{227+4*i}], v16, s[16:19], s5 offen offset:0")
        a("s_add_u32 s5, s5, 0x8000")
    a("s_waitcnt vmcnt(8)")
    for i in range(8):
        a(f"ds_write_b128 v17, v[{192+4*i}:{195+4*i}] offset:{L_K + (16+4*i)*KSTR}")
    a("s_waitcnt vmcnt(0)")
    for i in range(8):
        a(f"ds_write_b128 v18, v[{224+4*i}:{227+4*i}] offset:{L_V + (16+4*i)*VSTR}")
    a.label(pj)
    a("s_cmp_eq_u32 s40, 63")
    a(f"s_cbranch_scc1 {done}")
    g1 = a.newlabel("chain_g1")
    g1x = a.newlabel("chain_g1x")
    a("""
    s_and_b32 s3, s40, 1
    s_mul_i32 s3, s3, 0x60000
    s_add_u32 s4, s40, 1
    s_mov_b32 s42, 0
    """)
    a.label(g1)
    a(f"""
    buffer_load_dwordx4 v[192:195], v13, s[16:19], s3 offen sc1
    s_add_u32 s5, s3, 4096
    buffer_load_dwordx4 v[196:199], v13, s[16:19], s5 offen sc1
    s_add_u32 s5, s3, 8192
    buffer_load_dwordx4 v[200:203], v13, s[16:19], s5 offen sc1
    s_waitcnt vmcnt(0)
    v_cmp_ne_u32 vcc, s4, v193
    v_cmp_ne_u32 s[44:45], s4, v195
    s_or_b64 vcc, vcc, s[44:45]
    v_cmp_ne_u32 s[44:45], s4, v197
    s_or_b64 vcc, vcc, s[44:45]
    v_cmp_ne_u32 s[44:45], s4, v199
    s_or_b64 vcc, vcc, s[44:45]
    v_cmp_ne_u32 s[44:45], s4, v201
    s_or_b64 vcc, vcc, s[44:45]
    v_cmp_ne_u32 s[44:45], s4, v203
    s_or_b64 vcc, vcc, s[44:45]
    s_cbranch_vccz {g1x}
    s_add_u32 s42, s42, 1
    s_cmp_lt_u32 s42, {SPIN_LIMIT}
    s_cbranch_scc1 {g1}
    """)
    a.label(g1x)
    a(f"""
    v_mov_b32 v193, v194
    v_mov_b32 v197, v198
    v_mov_b32 v201, v202
    ds_write_b64 v14, v[192:193] offset:{L_Q}
    ds_write_b64 v14, v[196:197] offset:{L_K}
    ds_write_b64 v15, v[200:201] offset:{L_V}
    s_waitcnt lgkmcnt(0)
    s_barrier
    """)
    AS = 224
    for ks in range(4):
        a(f"ds_read_b128 v[{192+4*ks}:{195+4*ks}], v19 offset:{L_Q+ks*64}")
    for i in range(12):
        a(f"v_mov_b32 v{AS+i}, 0")
    for t in range(3):
        for ks in range(4):
            a(f"ds_read_b128 v[{208+4*ks}:{211+4*ks}], v20 offset:{L_K+t*16*KSTR+ks*64}")
        a("s_waitcnt lgkmcnt(0)")
        for ks in range(4):
            k = 208 + 4 * ks
            a(f"v_mfma_f32_16x16x32_bf16 v[{AS+4*t}:{AS+3+4*t}], v[{k}:{k+3}], v[{192+4*ks}:{195+4*ks}], v[{AS+4*t}:{AS+3+4*t}]")
        a("s_nop 7")
    a("s_nop 7")
    a("s_nop 1")
    a(f"s_mov_b32 s3, 0x{SCALE_BITS:x}")
    for i in range(12):
        r = AS + i
        a(f"v_cvt_pk_bf16_f32 v{r}, v{r}, v{r}")
        a(f"v_lshlrev_b32 v{r}, 16, v{r}")
        a(f"v_mul_f32 v{r}, s3, v{r}")
        a(f"v_cvt_pk_bf16_f32 v{r}, v{r}, v{r}")
        a(f"v_lshlrev_b32 v{r}, 16, v{r}")
    a("v_mov_b32 v192, 0xff800000")
    a("v_cmp_gt_u32 vcc, 32, v1")
    for i in range(4):
        a(f"v_cndmask_b32 v{AS+i}, v192, v{AS+i}, vcc")
    a(f"v_max3_f32 v193, v{AS}, v{AS+1}, v{AS+2}")
    for i in range(3, 11, 2):
        a(f"v_max3_f32 v193, v193, v{AS+i}, v{AS+i+1}")
    a(f"v_max_f32 v193, v193, v{AS+11}")
    a("ds_bpermute_b32 v194, v24, v193")
    a("s_waitcnt lgkmcnt(0)")
    a("v_max_f32 v193, v193, v194")
    a("ds_bpermute_b32 v194, v25, v193")
    a("s_waitcnt lgkmcnt(0)")
    a("v_max_f32 v193, v193, v194")
    a("s_mov_b32 s3, 0x3fb8aa3b")
    a("v_mul_f32 v193, s3, v193")
    a("v_mov_b32 v195, 0")
    for i in range(12):
        r = AS + i
        a(f"v_fma_f32 v{r}, v{r}, s3, -v193")
        a(f"v_exp_f32 v{r}, v{r}")
        a("s_nop 0")
        a(f"v_add_f32 v195, v195, v{r}")
    a("ds_bpermute_b32 v194, v24, v195")
    a("s_waitcnt lgkmcnt(0)")
    a("v_add_f32 v195, v195, v194")
    a("ds_bpermute_b32 v194, v25, v195")
    a("s_waitcnt lgkmcnt(0)")
    a("v_add_f32 v195, v195, v194")
    a("v_rcp_f32 v195, v195")
    a("s_nop 0")
    for i in range(12):
        a(f"v_mul_f32 v{AS+i}, v{AS+i}, v195")
    for t in range(3):
        a(f"v_cvt_pk_bf16_f32 v{196+2*t}, v{AS+4*t}, v{AS+1+4*t}")
        a(f"v_cvt_pk_bf16_f32 v{197+2*t}, v{AS+2+4*t}, v{AS+3+4*t}")
    for dt in range(2):
        for t in range(3):
            a(f"ds_read_b64_tr_b16 v[{208+2*(dt*3+t)}:{209+2*(dt*3+t)}], v21 offset:{L_V + t*16*VSTR + dt*32}")
    for i in range(8):
        a(f"v_mov_b32 v{AS+i}, 0")
    a("s_waitcnt lgkmcnt(0)")
    for dt in range(2):
        for t in range(3):
            v = 208 + 2 * (dt * 3 + t)
            a(f"v_mfma_f32_16x16x16_bf16 v[{AS+4*dt}:{AS+3+4*dt}], v[{v}:{v+1}], v[{196+2*t}:{197+2*t}], v[{AS+4*dt}:{AS+3+4*dt}]")
    a("s_nop 7")
    a("s_nop 1")
    for dt in range(2):
        a(f"v_cvt_pk_bf16_f32 v{192+2*dt}, v{AS+4*dt}, v{AS+1+4*dt}")
        a(f"v_cvt_pk_bf16_f32 v{193+2*dt}, v{AS+2+4*dt}, v{AS+3+4*dt}")
        a(f"ds_write_b64 v22, v[{192+2*dt}:{193+2*dt}] offset:{L_O + dt*32}")
    a("s_waitcnt lgkmcnt(0)")
    a("s_barrier")
    for ks in range(4):
        a(f"ds_read_b128 v[{192+4*ks}:{195+4*ks}], v19 offset:{L_O+ks*64}")
    for i in range(8):
        a(f"v_mov_b32 v{AS+i}, 0")
    a("s_waitcnt lgkmcnt(0)")
    for tt in range(2):
        for ks in range(4):
            w = 32 + (tt * 4 + ks) * 4
            a(f"v_mfma_f32_16x16x32_bf16 v[{AS+4*tt}:{AS+3+4*tt}], v[{192+4*ks}:{195+4*ks}], v[{w}:{w+3}], v[{AS+4*tt}:{AS+3+4*tt}]")
    a("s_nop 7")
    a("s_nop 1")
    a(f"""
    s_add_u32 s3, s40, 1
    s_lshl_b32 s3, s3, 15
    s_add_u32 s3, s3, 0x{WS['memacc']:x}
    v_cmp_gt_u32 vcc, 32, v1
    s_and_saveexec_b64 s[44:45], vcc
    """)
    for tt in range(2):
        for r in range(4):
            a(f"buffer_atomic_add_f32 v{AS+4*tt+r}, v23, s[16:19], s3 offen offset:{tt*64}")
            if r < 3:
                a("s_add_u32 s3, s3, 4096")
        a("s_sub_u32 s3, s3, 12288")
    a("s_mov_b64 exec, s[44:45]")
    a("s_waitcnt vmcnt(0)")
    a("s_barrier")
    nocnt = a.newlabel("chain_nocnt")
    a(f"""
    s_cmp_lg_u32 s38, 0
    s_cbranch_scc1 {nocnt}
    s_add_u32 s3, s40, 1
    s_lshl_b32 s3, s3, 15
    s_and_b32 s4, s2, {NSHARD-1}
    s_lshl_b32 s4, s4, 7
    s_add_u32 s3, s3, s4
    s_add_u32 s3, s3, 0x{WS['cnt']:x}
    v_mov_b32 v2, 1
    v_lshlrev_b32 v3, 10, v1
    v_cmp_gt_u32 vcc, 32, v1
    s_and_saveexec_b64 s[44:45], vcc
    buffer_atomic_add v2, v3, s[16:19], s3 offen
    s_mov_b64 exec, s[44:45]
    """)
    a.label(nocnt)
    a("s_add_u32 s40, s40, 1")
    a(f"s_branch {loop}")
    a.label(done)
    a("s_endpgm")

def gen_init(a, name):
    kernel_header(a, name)
    done = a.newlabel("init_done")
    make_srd(a, 8, SLOT['ws'], WS_SIZE)
    a(f"""
    s_cmp_ge_u32 s2, 1217
    s_cbranch_scc1 {done}
    s_lshl_b32 s3, s2, 12
    s_add_u32 s4, s3, 0x{WS['memacc']:x}
    s_cmp_lt_u32 s2, 512
    s_cbranch_scc1 {done}_go
    s_sub_u32 s4, s3, 0x200000
    s_add_u32 s4, s4, 0x{WS['e1']:x}
    s_cmp_lt_u32 s2, 704
    s_cbranch_scc1 {done}_go
    s_sub_u32 s4, s3, 0x2C0000
    s_add_u32 s4, s4, 0x{WS['cnt']:x}
    """)
    a.label(done + "_go")
    a("""
    v_lshlrev_b32 v1, 4, v0
    v_mov_b32 v2, 0
    v_mov_b32 v3, 0
    v_mov_b32 v4, 0
    v_mov_b32 v5, 0
    buffer_store_dwordx4 v[2:5], v1, s[8:11], s4 offen
    """)
    a.label(done)
    a("s_endpgm")
```

```python
from asmlib import *

def wait_counter(a, addr, val):
    l = a.newlabel("wc");
    make_srd(a, 40, SLOT['ws'], WS_SIZE)
    a(f"s_mov_b32 s44, 0x{addr:x}")
    a("v_mov_b32 v2, 0")
    a.label(l)
    a(f"""
    buffer_load_dword v3, v2, s[40:43], s44 offen sc1
    s_waitcnt vmcnt(0)
    v_cmp_gt_u32 vcc, {val}, v3
    s_cbranch_vccz {l}_x
    s_sleep 8
    s_branch {l}
    """)
    a.label(l + "_x")
    a("buffer_inv sc1")
    a("s_waitcnt vmcnt(0)")

def signal_counter(a, sreg):
    l = a.newlabel("sc")
    make_srd(a, 40, SLOT['ws'], WS_SIZE)
    a(f"""
    s_waitcnt vmcnt(0)
    s_barrier
    v_cmp_eq_u32 vcc, 0, v0
    s_and_saveexec_b64 s[44:45], vcc
    s_cbranch_execz {l}
    buffer_wbl2 sc1
    s_waitcnt vmcnt(0)
    v_mov_b32 v2, 0
    v_mov_b32 v3, 1
    buffer_atomic_add v3, v2, s[40:43], {sreg} offen
    """)
    a.label(l)
    a("s_mov_b64 exec, s[44:45]")

def gen_gemm(a, name, problems, header=True):
    if header: kernel_header(a, name)
    total = sum(p["Mt"] * p["Nt"] for p in problems)
    body = a.newlabel("gemm_body")
    start = 0
    for pi, p in enumerate(problems):
        nxt = a.newlabel("gemm_p")
        end = start + p["Mt"] * p["Nt"]
        a(f"s_cmp_ge_u32 s2, {end}")
        a(f"s_cbranch_scc1 {nxt}")
        make_srd(a, 8, SLOT[p["A"][0]], p["A"][2], p["A"][1])
        make_srd(a, 12, SLOT[p["B"][0]], p["B"][2], p["B"][1])
        make_srd(a, 16, SLOT[p["C"][0]], p["C"][2], p["C"][1])
        a(f"s_mov_b32 s20, {p['lda']*2}")
        a(f"s_mov_b32 s21, {p['ldb']*2}")
        a(f"s_mov_b32 s22, {p['ldc']*2}")
        a(f"s_mov_b32 s23, {p['nK']}")
        a(f"s_sub_u32 s3, s2, {start}")
        assert p["Mt"] == 16
        a("s_lshr_b32 s4, s3, 3")
        a("s_and_b32 s24, s4, 15")
        a("s_lshr_b32 s4, s4, 4")
        a("s_lshl_b32 s4, s4, 3")
        a("s_and_b32 s5, s3, 7")
        a("s_add_u32 s25, s4, s5")
        a("s_lshl_b32 s24, s24, 7")
        a("s_lshl_b32 s25, s25, 7")
        a(f"s_mov_b32 s29, {p['ccol']}")
        a(f"s_mov_b32 s35, {p.get('signal', 0)}")
        if p.get('wait'):
            wait_counter(a, *p['wait'])
        a(f"s_branch {body}")
        a.label(nxt)
        start = end
    a("s_endpgm")
    a.label(body)
    a("""
    v_and_b32 v1, 63, v0
    v_lshrrev_b32 v2, 6, v0
    s_nop 0
    v_readfirstlane_b32 s26, v2
    s_nop 3
    s_lshr_b32 s30, s26, 1
    s_and_b32 s31, s26, 1
    """)
    a("""
    v_lshrrev_b32 v2, 3, v1
    v_lshrrev_b32 v3, 4, v1
    v_and_b32 v4, 7, v1
    s_lshl_b32 s4, s26, 5
    s_add_u32 s4, s4, s24
    """)
    for ii in range(4):
        a(f"""
        v_add_u32 v5, {8*ii}, v2
        v_add_u32 v5, s4, v5
        v_mul_lo_u32 v6, v5, s20
        v_add_u32 v7, {4*(ii&1)}, v3
        v_xor_b32 v7, v7, v4
        v_lshlrev_b32 v7, 4, v7
        v_add_u32 v{10+ii}, v6, v7
        """)
    a("""
    v_bfe_u32 v5, v1, 2, 2
    v_xor_b32 v5, v5, v3
    v_lshlrev_b32 v5, 6, v5
    v_and_b32 v6, 3, v1
    v_lshlrev_b32 v6, 4, v6
    v_add_u32 v5, v5, v6
    s_lshl_b32 s5, s25, 1
    v_add_u32 v5, s5, v5
    s_lshl_b32 s4, s26, 4
    """)
    for ii in range(4):
        a(f"""
        v_add_u32 v6, {4*ii}, v3
        v_add_u32 v6, s4, v6
        v_mul_lo_u32 v6, v6, s21
        v_add_u32 v{14+ii}, v6, v5
        """)
    a("""
    v_and_b32 v5, 31, v1
    v_lshrrev_b32 v6, 5, v1
    s_lshl_b32 s4, s30, 6
    v_add_u32 v7, s4, v5
    v_lshlrev_b32 v7, 7, v7
    v_bfe_u32 v8, v5, 1, 3
    v_xor_b32 v8, v8, v6
    v_lshlrev_b32 v8, 4, v8
    v_add_u32 v20, v7, v8
    v_xor_b32 v21, 32, v20
    v_xor_b32 v22, 64, v20
    v_xor_b32 v23, 96, v20
    v_bfe_u32 v5, v1, 2, 2
    v_lshlrev_b32 v7, 11, v6
    v_lshlrev_b32 v8, 8, v5
    v_add_u32 v7, v7, v8
    v_bfe_u32 v8, v1, 4, 1
    v_lshlrev_b32 v8, 5, v8
    v_add_u32 v7, v7, v8
    v_and_b32 v8, 3, v1
    v_lshlrev_b32 v8, 3, v8
    v_add_u32 v7, v7, v8
    v_add_u32 v7, 0x4000, v7
    s_lshl_b32 s4, s31, 1
    """)
    for nt in range(2):
        a(f"""
        s_add_u32 s5, s4, {nt}
        v_xor_b32 v8, s5, v5
        v_lshlrev_b32 v8, 6, v8
        v_add_u32 v{24+nt}, v7, v8
        """)
    for i in range(64):
        a(f"v_mov_b32 v{64+i}, 0")
    a("s_mov_b32 s27, 0")
    a("s_mov_b32 s28, 0")
    a("s_lshl_b32 s32, s21, 6")
    a("s_lshl_b32 s33, s26, 12")

    def dma(par):
        for ii in range(4):
            a(f"s_add_u32 m0, s33, {par*32768 + ii*1024}")
            a("s_nop 0")
            a(f"buffer_load_dwordx4 v{10+ii}, s[8:11], s27 offen lds")
        for ii in range(4):
            a(f"s_add_u32 m0, s33, {par*32768 + 16384 + ii*1024}")
            a("s_nop 0")
            a(f"buffer_load_dwordx4 v{14+ii}, s[12:15], s28 offen lds")
        a("s_add_u32 s27, s27, 128")
        a("s_add_u32 s28, s28, s32")

    def reads(par, kk, st):
        b = 32 + st * 16
        for mt in range(2):
            a(f"ds_read_b128 v[{b+mt*4}:{b+mt*4+3}], v{20+kk} offset:{par*32768+mt*4096}")
        for nt in range(2):
            for half in range(2):
                r = b + 8 + nt * 4 + half * 2
                a(f"ds_read_b64_tr_b16 v[{r}:{r+1}], v{24+nt} offset:{par*32768+kk*4096+half*1024}")

    def compute(par):
        reads(par, 0, 0)
        for kk in range(4):
            if kk < 3:
                reads(par, kk + 1, (kk + 1) & 1)
                a("s_waitcnt lgkmcnt(6)")
            else:
                a("s_waitcnt lgkmcnt(0)")
            b = 32 + (kk & 1) * 16
            for nt in range(2):
                for mt in range(2):
                    acc = 64 + (nt * 2 + mt) * 16
                    a(f"v_mfma_f32_32x32x16_bf16 v[{acc}:{acc+15}], v[{b+8+nt*4}:{b+8+nt*4+3}], v[{b+mt*4}:{b+mt*4+3}], v[{acc}:{acc+15}]")

    loop = a.newlabel("gemm_loop")
    last = a.newlabel("gemm_last")
    join = a.newlabel("gemm_join")
    dma(0)
    a("s_mov_b32 s34, 0")
    a.label(loop)
    dma(1)
    a("s_waitcnt vmcnt(8)")
    a("s_barrier")
    compute(0)
    a("s_barrier")
    a("s_add_u32 s34, s34, 2")
    a("s_cmp_ge_u32 s34, s23")
    a(f"s_cbranch_scc1 {last}")
    dma(0)
    a("s_waitcnt vmcnt(8)")
    a(f"s_branch {join}")
    a.label(last)
    a("s_waitcnt vmcnt(0)")
    a.label(join)
    a("s_barrier")
    compute(1)
    a("s_barrier")
    a("s_cmp_lt_u32 s34, s23")
    a(f"s_cbranch_scc1 {loop}")
    a("s_nop 15")
    a("""
    v_and_b32 v2, 31, v1
    s_lshl_b32 s4, s30, 6
    s_add_u32 s4, s4, s24
    v_add_u32 v2, s4, v2
    v_mul_lo_u32 v2, v2, s22
    v_lshrrev_b32 v3, 5, v1
    v_lshlrev_b32 v3, 3, v3
    s_lshl_b32 s4, s31, 6
    s_add_u32 s4, s4, s25
    s_add_u32 s4, s4, s29
    s_lshl_b32 s4, s4, 1
    v_add_u32 v3, s4, v3
    v_add_u32 v2, v2, v3
    s_lshl_b32 s5, s22, 5
    v_add_u32 v3, s5, v2
    """)
    t = 32
    for nt in range(2):
        for mt in range(2):
            acc = 64 + (nt * 2 + mt) * 16
            for jj in range(4):
                a(f"v_cvt_pk_bf16_f32 v{t}, v{acc+4*jj}, v{acc+4*jj+1}")
                a(f"v_cvt_pk_bf16_f32 v{t+1}, v{acc+4*jj+2}, v{acc+4*jj+3}")
                a(f"buffer_store_dwordx2 v[{t}:{t+1}], v{2+mt}, s[16:19], 0 offen offset:{nt*64+jj*16}")
                t += 2
                if t >= 64: t = 32
    nosig = a.newlabel("gemm_nosig")
    a("s_cmp_eq_u32 s35, 0")
    a(f"s_cbranch_scc1 {nosig}")
    signal_counter(a, "s35")
    a.label(nosig)
    a("s_endpgm")
    return total
```

```python
import sys
from asmlib import *
from gemm import gen_gemm
from chain import *
from attn_a import *
from attn_b import *
a = Asm()
C1 = WS['cnt'] + 0x200000; C2 = C1 + 256
probs1 = [
  dict(A=("B_x",0,2048*1024*2), lda=1024, B=("B_Wk",0,1024*4096*2), ldb=4096, C=("ws",WS["Kx"],2048*4096*2), ldc=4096, ccol=0, Mt=16, Nt=32, nK=16),
  dict(A=("B_x",0,2048*1024*2), lda=1024, B=("B_Wv",0,1024*4096*2), ldb=4096, C=("ws",WS["Vx"],2048*4096*2), ldc=4096, ccol=0, Mt=16, Nt=32, nK=16),
]
probsM1 = [
  dict(A=("A_x",0,2048*1024*2), lda=1024, B=("A_wqkv",0,1024*3072*2), ldb=3072, C=("ws",WS["qkvA"],2048*3072*2), ldc=3072, ccol=0, Mt=16, Nt=24, nK=16, signal=C1),
  dict(A=("B_x",0,2048*1024*2), lda=1024, B=("B_Wq",0,1024*4096*2), ldb=4096, C=("ws",WS["Qx"],2048*4096*2), ldc=4096, ccol=0, Mt=16, Nt=32, nK=16),
]
probsM2 = [
  dict(A=("ws",WS["oA"],2048*1024*2), lda=1024, B=("A_wo",0,1024*1024*2), ldb=1024, C=("out",0,2048*2048*2), ldc=2048, ccol=0, Mt=16, Nt=8, nK=16, wait=(C2, 512)),
]
probs2 = [
  dict(A=("ws",WS["oB"],2048*4096*2), lda=4096, B=("B_Wo",0,4096*1024*2), ldb=1024, C=("out",0,2048*2048*2), ldc=2048, ccol=1024, Mt=16, Nt=8, nK=64),
]
t1 = gen_gemm(a, "gemm1_kernel", probs1)
t2 = gen_gemm(a, "gemm2_kernel", probs2)
gen_init(a, "init_kernel")
kernel_header(a, "mega_kernel")
a("s_cmp_ge_u32 s2, 256"); a("s_cbranch_scc1 mega_w1")
gen_chain(a, "x", header=False)
a.label("mega_w1")
a("s_sub_u32 s2, s2, 256")
a("s_cmp_ge_u32 s2, 896"); a("s_cbranch_scc1 mega_w2")
gen_gemm(a, "x", probsM1, header=False)
a.label("mega_w2")
a("s_sub_u32 s2, s2, 896")
a("s_cmp_ge_u32 s2, 512"); a("s_cbranch_scc1 mega_w3")
gen_attn_a(a, "x", header=False, wait=(C1, 384), signal=C2)
a.label("mega_w3")
a("s_sub_u32 s2, s2, 512")
gen_gemm(a, "x", probsM2, header=False)
gen_attn_b(a, "attnb_kernel")
launches = [
  ("init_kernel", 1217, 0), ("gemm1_kernel", t1, 65536),
  ("mega_kernel", 256+896+512+128, 73728), ("attnb_kernel", 512, B3_LDS), ("gemm2_kernel", t2, 65536)]
src = open("concat_heads__sliding_block__memory_aug_recurrent_mem_tr__prompt.s.ref").read()
head = src[:src.index("; Override launch geometry")]
hdr = head + "".join(f"; @launch kernel={k} grid=({g},1,1) block=(256,1,1) lds={l}\n" for k, g, l in launches)
descs = [("gemm1_kernel",128),("gemm2_kernel",128),("init_kernel",8),("mega_kernel",256),("attnb_kernel",136)]
out = hdr + '.amdgcn_target "amdgcn-amd-amdhsa--gfx950"\n.text\n' + a.text() + '.section .rodata,"a"\n' + "".join(".p2align 6\n" + descriptor(n, v) for n, v in descs)
dst = sys.argv[1] if len(sys.argv) > 1 else "concat_heads__sliding_block__memory_aug_recurrent_mem_tr__prompt.s"
open(dst, "w").write(out)
print("written", dst, len(out))
```

```python
import sys
from asmlib import *
from gemm import gen_gemm
from chain import *
from attn_a import *
from attn_b import *
a = Asm()
C1 = WS['cnt'] + 0x200000; C2 = C1 + 256
probs1 = [
  dict(A=("B_x",0,2048*1024*2), lda=1024, B=("B_Wk",0,1024*4096*2), ldb=4096, C=("ws",WS["Kx"],2048*4096*2), ldc=4096, ccol=0, Mt=16, Nt=32, nK=16),
  dict(A=("B_x",0,2048*1024*2), lda=1024, B=("B_Wv",0,1024*4096*2), ldb=4096, C=("ws",WS["Vx"],2048*4096*2), ldc=4096, ccol=0, Mt=16, Nt=32, nK=16),
]
probsM1 = [
  dict(A=("A_x",0,2048*1024*2), lda=1024, B=("A_wqkv",0,1024*3072*2), ldb=3072, C=("ws",WS["qkvA"],2048*3072*2), ldc=3072, ccol=0, Mt=16, Nt=24, nK=16),
  dict(A=("B_x",0,2048*1024*2), lda=1024, B=("B_Wq",0,1024*4096*2), ldb=4096, C=("ws",WS["Qx"],2048*4096*2), ldc=4096, ccol=0, Mt=16, Nt=32, nK=16),
]
probsM2 = [
  dict(A=("ws",WS["oA"],2048*1024*2), lda=1024, B=("A_wo",0,1024*1024*2), ldb=1024, C=("out",0,2048*2048*2), ldc=2048, ccol=0, Mt=16, Nt=8, nK=16),
]
probs2 = probsM2 + [
  dict(A=("ws",WS["oB"],2048*4096*2), lda=4096, B=("B_Wo",0,4096*1024*2), ldb=1024, C=("out",0,2048*2048*2), ldc=2048, ccol=1024, Mt=16, Nt=8, nK=64),
]
t1 = gen_gemm(a, "gemm1_kernel", probs1)
t2 = gen_gemm(a, "gemm2_kernel", probs2)
gen_init(a, "init_kernel")
kernel_header(a, "mega_kernel")
a("s_cmp_ge_u32 s2, 256"); a("s_cbranch_scc1 mega_w1")
gen_chain(a, "x", header=False)
a.label("mega_w1")
a("s_sub_u32 s2, s2, 256")
a("s_cmp_ge_u32 s2, 896"); a("s_cbranch_scc1 mega_w2")
gen_gemm(a, "x", probsM1, header=False)
a.label("mega_w2")
a("s_endpgm")
gen_attn_a(a, "attna_kernel")
gen_attn_b(a, "attnb_kernel")
launches = [
  ("init_kernel", 1217, 0), ("gemm1_kernel", t1, 65536),
  ("mega_kernel", 256+896, 73728), ("attna_kernel", 512, A2_LDS), ("attnb_kernel", 512, B3_LDS), ("gemm2_kernel", t2, 65536)]
src = open("concat_heads__sliding_block__memory_aug_recurrent_mem_tr__prompt.s.ref").read()
head = src[:src.index("; Override launch geometry")]
hdr = head + "".join(f"; @launch kernel={k} grid=({g},1,1) block=(256,1,1) lds={l}\n" for k, g, l in launches)
descs = [("gemm1_kernel",128),("gemm2_kernel",128),("init_kernel",8),("mega_kernel",256),("attnb_kernel",136),("attna_kernel",224)]
out = hdr + '.amdgcn_target "amdgcn-amd-amdhsa--gfx950"\n.text\n' + a.text() + '.section .rodata,"a"\n' + "".join(".p2align 6\n" + descriptor(n, v) for n, v in descs)
dst = sys.argv[1] if len(sys.argv) > 1 else "concat_heads__sliding_block__memory_aug_recurrent_mem_tr__prompt.s"
open(dst, "w").write(out)
print("written", dst, len(out))
```

```python
from asmlib import *

L_MEM = 0x0
MEMSTR = 2064
L_K = 0x5000
KSTR = 272
L_V = 0x8400
VSTR = 288
L_Q = 0xBC00
L_O = 0xC800
L_WO = 0x18000
CHAIN_LDS = 73728
SCALE_BITS = 0x3DB504F3
SPIN_LIMIT = 1 << 22

def gen_chain(a, name, header=True):
    if header: kernel_header(a, name)
    a("s_setprio 3")
    done = a.newlabel("chain_done")
    a("s_cmp_ge_u32 s2, 256")
    a(f"s_cbranch_scc1 {done}")
    a("""
    s_and_b32 s3, s2, 7
    s_lshr_b32 s4, s2, 3
    s_lshr_b32 s5, s4, 3
    s_lshl_b32 s3, s3, 2
    s_add_u32 s36, s3, s5
    s_and_b32 s37, s4, 7
    v_and_b32 v1, 63, v0
    v_lshrrev_b32 v2, 6, v0
    s_nop 0
    v_readfirstlane_b32 s38, v2
    s_nop 3
    """)
    a(f"""
    s_load_dwordx2 s[8:9], s[0:1], {SLOT['B_Wq']}
    s_load_dwordx2 s[12:13], s[0:1], {SLOT['B_Wk']}
    s_load_dwordx2 s[16:17], s[0:1], {SLOT['B_Wv']}
    s_waitcnt lgkmcnt(0)
    s_cmp_eq_u32 s38, 1
    s_cselect_b32 s8, s12, s8
    s_cselect_b32 s9, s13, s9
    s_cmp_eq_u32 s38, 2
    s_cselect_b32 s8, s16, s8
    s_cselect_b32 s9, s17, s9
    s_mov_b32 s10, 0x800000
    s_mov_b32 s11, 0x00020000
    """)
    make_srd(a, 12, SLOT['B_Wo'], 0x800000)
    make_srd(a, 16, SLOT['ws'], WS_SIZE)
    make_srd(a, 20, SLOT['B_mem0'], 8*1024*2)
    make_srd(a, 24, SLOT['ws'], 0x400000, WS['kmem'])
    make_srd(a, 28, SLOT['ws'], 0x400000, WS['vmem'])
    a(f"""
    v_lshrrev_b32 v2, 2, v1
    v_lshlrev_b32 v2, 11, v2
    v_and_b32 v3, 3, v1
    v_lshlrev_b32 v3, 4, v3
    v_add_u32 v2, v2, v3
    s_lshl_b32 s3, s36, 18
    s_lshl_b32 s4, s37, 8
    s_add_u32 s3, s3, s4
    s_lshl_b32 s4, s38, 6
    s_add_u32 s3, s3, s4
    v_add_u32 v2, s3, v2
    s_lshl_b32 s4, s38, 13
    s_mov_b32 s5, 0
    """)
    for i in range(8):
        a(f"s_add_u32 m0, s4, {i*1024}")
        a("s_nop 0")
        a("buffer_load_dwordx4 v2, s[12:15], s5 offen lds")
        a("s_add_u32 s5, s5, 0x8000")
    a("s_waitcnt vmcnt(0)")
    a("""
    v_lshrrev_b32 v2, 4, v1
    v_bfe_u32 v3, v1, 2, 2
    v_and_b32 v4, 3, v1
    v_lshlrev_b32 v5, 3, v2
    v_add_u32 v5, v5, v3
    v_lshlrev_b32 v6, 6, v5
    v_lshlrev_b32 v7, 3, v4
    v_add_u32 v6, v6, v7
    s_lshl_b32 s4, s38, 13
    v_add_u32 v6, s4, v6
    """)
    for tile in range(2):
        for ks in range(4):
            for part in range(2):
                r = 32 + (tile * 4 + ks) * 4 + part * 2
                a(f"ds_read_b64_tr_b16 v[{r}:{r+1}], v6 offset:{ks*2048 + part*256 + tile*32}")
    a("s_waitcnt lgkmcnt(0)")
    a("s_barrier")
    nowp = a.newlabel("chain_nowp")
    a(f"""
    s_cmp_eq_u32 s38, 3
    s_cbranch_scc1 {nowp}
    v_lshrrev_b32 v2, 1, v1
    v_lshlrev_b32 v2, 13, v2
    v_and_b32 v3, 1, v1
    v_lshlrev_b32 v3, 4, v3
    v_add_u32 v2, v2, v3
    s_lshl_b32 s3, s36, 8
    s_lshl_b32 s4, s37, 5
    s_add_u32 s3, s3, s4
    v_add_u32 v2, s3, v2
    s_lshl_b32 s4, s38, 14
    s_mov_b32 s5, 0
    v_lshlrev_b32 v6, 5, v5
    v_lshlrev_b32 v7, 3, v4
    v_add_u32 v6, v6, v7
    v_add_u32 v6, s4, v6
    """)
    for rnd in range(2):
        for i in range(16):
            a(f"s_add_u32 m0, s4, {i*1024}")
            a("s_nop 0")
            a("buffer_load_dwordx4 v2, s[8:11], s5 offen lds")
            a("s_add_u32 s5, s5, 0x40000")
        a("s_waitcnt vmcnt(0)")
        for ks in range(16):
            for part in range(2):
                r = 64 + (rnd * 16 + ks) * 4 + part * 2
                a(f"ds_read_b64_tr_b16 v[{r}:{r+1}], v6 offset:{ks*1024 + part*128}")
        a("s_waitcnt lgkmcnt(0)")
    a.label(nowp)
    a("s_barrier")
    a(f"""
    v_mov_b32 v2, 0
    v_mov_b32 v3, 0
    v_mov_b32 v4, 0
    v_mov_b32 v5, 0
    v_lshlrev_b32 v6, 4, v0
    v_cmp_gt_u32 vcc, 144, v0
    s_and_saveexec_b64 s[40:41], vcc
    ds_write_b128 v6, v[2:5] offset:{L_V + 8*VSTR}
    ds_write_b128 v6, v[2:5] offset:{L_K + 8*KSTR}
    s_mov_b64 exec, s[40:41]
    """)
    a(f"""
    v_and_b32 v2, 7, v1
    v_mul_u32_u24 v8, {MEMSTR}, v2
    v_lshrrev_b32 v3, 4, v1
    v_lshlrev_b32 v4, 4, v3
    v_add_u32 v8, v8, v4
    """)
    a(f"""
    v_lshrrev_b32 v2, 5, v0
    v_mul_u32_u24 v9, {MEMSTR}, v2
    v_and_b32 v3, 31, v0
    v_lshlrev_b32 v4, 6, v3
    v_add_u32 v9, v9, v4
    v_lshlrev_b32 v10, 12, v2
    v_lshlrev_b32 v4, 7, v3
    v_add_u32 v10, v10, v4
    """)
    a(f"""
    v_lshrrev_b32 v2, 4, v1
    v_lshlrev_b32 v2, 3, v2
    v_and_b32 v3, 7, v1
    v_add_u32 v2, v2, v3
    v_lshlrev_b32 v11, 4, v2
    s_lshl_b32 s3, s38, 3
    s_add_u32 s3, s3, s37
    s_lshl_b32 s3, s3, 9
    s_mul_i32 s4, s36, 12288
    s_add_u32 s3, s3, s4
    s_add_u32 s3, s3, 0x{WS['e1']:x}
    v_add_u32 v11, s3, v11
    """)
    a(f"""
    v_and_b32 v2, 7, v1
    v_lshlrev_b32 v12, 13, v2
    v_lshrrev_b32 v3, 4, v1
    v_lshlrev_b32 v3, 3, v3
    v_add_u32 v12, v12, v3
    s_lshl_b32 s3, s36, 8
    s_lshl_b32 s4, s37, 5
    s_add_u32 s3, s3, s4
    v_add_u32 v12, s3, v12
    """)
    a(f"""
    v_lshlrev_b32 v13, 4, v0
    s_mul_i32 s4, s36, 12288
    s_add_u32 s4, s4, 0x{WS['e1']:x}
    v_add_u32 v13, s4, v13
    """)
    a(f"""
    v_and_b32 v2, 7, v0
    v_mul_u32_u24 v14, {KSTR}, v2
    v_lshrrev_b32 v3, 5, v0
    v_lshlrev_b32 v3, 5, v3
    v_add_u32 v14, v14, v3
    v_bfe_u32 v3, v0, 3, 2
    v_lshlrev_b32 v3, 3, v3
    v_add_u32 v14, v14, v3
    v_mul_u32_u24 v15, {VSTR}, v2
    v_lshrrev_b32 v3, 5, v0
    v_lshlrev_b32 v3, 5, v3
    v_add_u32 v15, v15, v3
    v_bfe_u32 v3, v0, 3, 2
    v_lshlrev_b32 v3, 3, v3
    v_add_u32 v15, v15, v3
    """)
    a(f"""
    v_lshrrev_b32 v2, 4, v1
    v_lshlrev_b32 v16, 13, v2
    v_and_b32 v3, 15, v1
    v_lshlrev_b32 v4, 4, v3
    v_add_u32 v16, v16, v4
    s_lshl_b32 s3, s36, 8
    v_add_u32 v16, s3, v16
    v_mul_u32_u24 v17, {KSTR}, v2
    v_add_u32 v17, v17, v4
    v_mul_u32_u24 v18, {VSTR}, v2
    v_add_u32 v18, v18, v4
    """)
    a(f"""
    v_and_b32 v2, 7, v1
    v_mul_u32_u24 v19, {KSTR}, v2
    v_lshrrev_b32 v3, 4, v1
    v_lshlrev_b32 v4, 4, v3
    v_add_u32 v19, v19, v4
    v_and_b32 v2, 15, v1
    v_mul_u32_u24 v20, {KSTR}, v2
    v_add_u32 v20, v20, v4
    """)
    a(f"""
    v_lshrrev_b32 v2, 4, v1
    v_lshlrev_b32 v2, 2, v2
    v_bfe_u32 v3, v1, 2, 2
    v_add_u32 v2, v2, v3
    v_mul_u32_u24 v21, {VSTR}, v2
    v_and_b32 v3, 3, v1
    v_lshlrev_b32 v3, 3, v3
    v_add_u32 v21, v21, v3
    s_lshl_b32 s3, s38, 6
    v_add_u32 v21, s3, v21
    """)
    a(f"""
    v_and_b32 v2, 7, v1
    v_mul_u32_u24 v22, {KSTR}, v2
    v_lshrrev_b32 v3, 4, v1
    v_lshlrev_b32 v4, 3, v3
    v_add_u32 v22, v22, v4
    s_lshl_b32 s3, s38, 6
    v_add_u32 v22, s3, v22
    v_lshlrev_b32 v23, 14, v3
    v_and_b32 v2, 15, v1
    v_lshlrev_b32 v2, 2, v2
    v_add_u32 v23, v23, v2
    s_lshl_b32 s3, s37, 9
    s_lshl_b32 s4, s38, 7
    s_add_u32 s3, s3, s4
    v_add_u32 v23, s3, v23
    v_xor_b32 v2, 16, v1
    v_lshlrev_b32 v24, 2, v2
    v_xor_b32 v2, 32, v1
    v_lshlrev_b32 v25, 2, v2
    v_lshlrev_b32 v26, 7, v1
    """)
    a("s_mov_b32 s40, 0")
    loop = a.newlabel("chain_loop")
    first = a.newlabel("chain_first")
    havemem = a.newlabel("chain_havemem")
    a.label(loop)
    a("s_cmp_eq_u32 s40, 0")
    a(f"s_cbranch_scc1 {first}")
    poll = a.newlabel("chain_poll")
    pollx = a.newlabel("chain_pollx")
    a(f"""
    s_cmp_lg_u32 s38, 0
    s_cbranch_scc1 {pollx}
    s_lshl_b32 s3, s40, 15
    s_add_u32 s3, s3, 0x{WS['cnt']:x}
    s_lshr_b32 s4, s2, 3
    s_and_b32 s4, s4, 31
    s_lshl_b32 s4, s4, 10
    s_add_u32 s3, s3, s4
    s_mov_b32 s42, 0
    v_cmp_gt_u32 vcc, {NSHARD}, v1
    s_and_saveexec_b64 s[44:45], vcc
    """)
    a.label(poll)
    a(f"""
    buffer_load_dword v192, v26, s[16:19], s3 offen sc1
    s_waitcnt vmcnt(0)
    v_cmp_ne_u32 vcc, {256//NSHARD}, v192
    s_cbranch_vccz {pollx}_r
    s_sleep 1
    s_add_u32 s42, s42, 1
    s_cmp_lt_u32 s42, {SPIN_LIMIT}
    s_cbranch_scc1 {poll}
    """)
    a.label(pollx + "_r")
    a("s_mov_b64 exec, s[44:45]")
    a.label(pollx)
    a("s_barrier")
    a(f"""
    s_lshl_b32 s3, s40, 15
    s_add_u32 s3, s3, 0x{WS['memacc']:x}
    """)
    a("s_lshl_b32 s4, s38, 13")
    a("s_add_u32 s3, s3, s4")
    a("v_lshlrev_b32 v2, 4, v1")
    for i in range(8):
        a(f"buffer_load_dwordx4 v[{192+4*i}:{195+4*i}], v2, s[16:19], s3 offen offset:{(i&3)*1024}")
        if i == 3: a("s_add_u32 s3, s3, 4096")
    a(f"s_mul_i32 s4, s38, {2*MEMSTR}")
    a("v_lshlrev_b32 v2, 3, v1")
    a("v_add_u32 v2, s4, v2")
    for i in range(8):
        a(f"s_waitcnt vmcnt({7-i})")
        a(f"v_cvt_pk_bf16_f32 v{192+4*i}, v{192+4*i}, v{193+4*i}")
        a(f"v_cvt_pk_bf16_f32 v{193+4*i}, v{194+4*i}, v{195+4*i}")
        a(f"ds_write_b64 v2, v[{192+4*i}:{193+4*i}] offset:{L_MEM + (i>>2)*MEMSTR + (i&3)*512}")
    a(f"s_branch {havemem}")
    a.label(first)
    a("v_lshrrev_b32 v2, 5, v0")
    a("v_lshlrev_b32 v2, 11, v2")
    a("v_and_b32 v3, 31, v0")
    a("v_lshlrev_b32 v3, 6, v3")
    a("v_add_u32 v2, v2, v3")
    for i in range(4):
        a(f"buffer_load_dwordx4 v[{192+4*i}:{195+4*i}], v2, s[20:23], 0 offen offset:{16*i}")
    a("s_waitcnt vmcnt(0)")
    for i in range(4):
        a(f"ds_write_b128 v9, v[{192+4*i}:{195+4*i}] offset:{L_MEM+16*i}")
    a.label(havemem)
    a("s_waitcnt lgkmcnt(0)")
    a("s_barrier")
    w3 = a.newlabel("chain_w3")
    pj = a.newlabel("chain_pj")
    a("s_cmp_eq_u32 s38, 3")
    a(f"s_cbranch_scc1 {w3}")
    for i in range(4):
        a(f"v_mov_b32 v{192+i}, 0")
    NB = 4
    for ks in range(NB):
        a(f"ds_read_b128 v[{200+4*ks}:{203+4*ks}], v8 offset:{L_MEM+ks*64}")
    for ks in range(32):
        if ks + NB < 32:
            a(f"s_waitcnt lgkmcnt({NB-1})")
        else:
            a(f"s_waitcnt lgkmcnt({31-ks})")
        b = 200 + 4 * (ks % NB)
        w = 64 + 4 * ks
        a(f"v_mfma_f32_16x16x32_bf16 v[192:195], v[{w}:{w+3}], v[{b}:{b+3}], v[192:195]")
        if ks + NB < 32:
            a(f"ds_read_b128 v[{b}:{b+3}], v8 offset:{L_MEM+(ks+NB)*64}")
    a("s_nop 7")
    a("v_cvt_pk_bf16_f32 v196, v192, v193")
    a("v_cvt_pk_bf16_f32 v198, v194, v195")
    a("s_add_u32 s3, s40, 1")
    a("v_mov_b32 v197, s3")
    a("v_mov_b32 v199, s3")
    a("v_and_b32 v2, 8, v1")
    a("v_cmp_eq_u32 vcc, 0, v2")
    a("s_and_saveexec_b64 s[44:45], vcc")
    a("s_and_b32 s3, s40, 1")
    a("s_mul_i32 s3, s3, 0x60000")
    a("buffer_store_dwordx4 v[196:199], v11, s[16:19], s3 offen sc1")
    nokv = a.newlabel("chain_nokv")
    a("s_cmp_eq_u32 s38, 0")
    a(f"s_cbranch_scc1 {nokv}")
    a("v_mov_b32 v197, v198")
    a("s_lshl_b32 s3, s40, 16")
    kv2 = a.newlabel("chain_kv2")
    a("s_cmp_eq_u32 s38, 2")
    a(f"s_cbranch_scc1 {kv2}")
    a("buffer_store_dwordx2 v[196:197], v12, s[24:27], s3 offen")
    a(f"s_branch {nokv}")
    a.label(kv2)
    a("buffer_store_dwordx2 v[196:197], v12, s[28:31], s3 offen")
    a.label(nokv)
    a("s_mov_b64 exec, s[44:45]")
    a(f"s_branch {pj}")
    a.label(w3)
    a(f"""
    s_lshl_b32 s3, s40, 18
    s_add_u32 s4, s3, 0x{WS['Kx']:x}
    s_add_u32 s5, s3, 0x{WS['Vx']:x}
    """)
    for i in range(8):
        a(f"buffer_load_dwordx4 v[{192+4*i}:{195+4*i}], v16, s[16:19], s4 offen offset:0")
        a("s_add_u32 s4, s4, 0x8000")
    for i in range(8):
        a(f"buffer_load_dwordx4 v[{224+4*i}:{227+4*i}], v16, s[16:19], s5 offen offset:0")
        a("s_add_u32 s5, s5, 0x8000")
    a("s_waitcnt vmcnt(8)")
    for i in range(8):
        a(f"ds_write_b128 v17, v[{192+4*i}:{195+4*i}] offset:{L_K + (16+4*i)*KSTR}")
    a("s_waitcnt vmcnt(0)")
    for i in range(8):
        a(f"ds_write_b128 v18, v[{224+4*i}:{227+4*i}] offset:{L_V + (16+4*i)*VSTR}")
    a.label(pj)
    a("s_cmp_eq_u32 s40, 63")
    a(f"s_cbranch_scc1 {done}")
    g1 = a.newlabel("chain_g1")
    g1x = a.newlabel("chain_g1x")
    a("""
    s_and_b32 s3, s40, 1
    s_mul_i32 s3, s3, 0x60000
    s_add_u32 s4, s40, 1
    s_mov_b32 s42, 0
    """)
    a.label(g1)
    a(f"""
    buffer_load_dwordx4 v[192:195], v13, s[16:19], s3 offen sc1
    s_add_u32 s5, s3, 4096
    buffer_load_dwordx4 v[196:199], v13, s[16:19], s5 offen sc1
    s_add_u32 s5, s3, 8192
    buffer_load_dwordx4 v[200:203], v13, s[16:19], s5 offen sc1
    s_waitcnt vmcnt(0)
    v_cmp_ne_u32 vcc, s4, v193
    v_cmp_ne_u32 s[44:45], s4, v195
    s_or_b64 vcc, vcc, s[44:45]
    v_cmp_ne_u32 s[44:45], s4, v197
    s_or_b64 vcc, vcc, s[44:45]
    v_cmp_ne_u32 s[44:45], s4, v199
    s_or_b64 vcc, vcc, s[44:45]
    v_cmp_ne_u32 s[44:45], s4, v201
    s_or_b64 vcc, vcc, s[44:45]
    v_cmp_ne_u32 s[44:45], s4, v203
    s_or_b64 vcc, vcc, s[44:45]
    s_cbranch_vccz {g1x}
    s_add_u32 s42, s42, 1
    s_cmp_lt_u32 s42, {SPIN_LIMIT}
    s_cbranch_scc1 {g1}
    """)
    a.label(g1x)
    a(f"""
    v_mov_b32 v193, v194
    v_mov_b32 v197, v198
    v_mov_b32 v201, v202
    ds_write_b64 v14, v[192:193] offset:{L_Q}
    ds_write_b64 v14, v[196:197] offset:{L_K}
    ds_write_b64 v15, v[200:201] offset:{L_V}
    s_waitcnt lgkmcnt(0)
    s_barrier
    """)
    AS = 224
    for ks in range(4):
        a(f"ds_read_b128 v[{192+4*ks}:{195+4*ks}], v19 offset:{L_Q+ks*64}")
    for i in range(12):
        a(f"v_mov_b32 v{AS+i}, 0")
    for t in range(3):
        for ks in range(4):
            a(f"ds_read_b128 v[{208+4*ks}:{211+4*ks}], v20 offset:{L_K+t*16*KSTR+ks*64}")
        a("s_waitcnt lgkmcnt(0)")
        for ks in range(4):
            k = 208 + 4 * ks
            a(f"v_mfma_f32_16x16x32_bf16 v[{AS+4*t}:{AS+3+4*t}], v[{k}:{k+3}], v[{192+4*ks}:{195+4*ks}], v[{AS+4*t}:{AS+3+4*t}]")
        a("s_nop 7")
    a("s_nop 7")
    a("s_nop 1")
    a(f"s_mov_b32 s3, 0x{SCALE_BITS:x}")
    for i in range(12):
        r = AS + i
        a(f"v_cvt_pk_bf16_f32 v{r}, v{r}, v{r}")
        a(f"v_lshlrev_b32 v{r}, 16, v{r}")
        a(f"v_mul_f32 v{r}, s3, v{r}")
        a(f"v_cvt_pk_bf16_f32 v{r}, v{r}, v{r}")
        a(f"v_lshlrev_b32 v{r}, 16, v{r}")
    a("v_mov_b32 v192, 0xff800000")
    a("v_cmp_gt_u32 vcc, 32, v1")
    for i in range(4):
        a(f"v_cndmask_b32 v{AS+i}, v192, v{AS+i}, vcc")
    a(f"v_max3_f32 v193, v{AS}, v{AS+1}, v{AS+2}")
    for i in range(3, 11, 2):
        a(f"v_max3_f32 v193, v193, v{AS+i}, v{AS+i+1}")
    a(f"v_max_f32 v193, v193, v{AS+11}")
    a("ds_bpermute_b32 v194, v24, v193")
    a("s_waitcnt lgkmcnt(0)")
    a("v_max_f32 v193, v193, v194")
    a("ds_bpermute_b32 v194, v25, v193")
    a("s_waitcnt lgkmcnt(0)")
    a("v_max_f32 v193, v193, v194")
    a("s_mov_b32 s3, 0x3fb8aa3b")
    a("v_mul_f32 v193, s3, v193")
    a("v_mov_b32 v195, 0")
    for i in range(12):
        r = AS + i
        a(f"v_fma_f32 v{r}, v{r}, s3, -v193")
        a(f"v_exp_f32 v{r}, v{r}")
        a("s_nop 0")
        a(f"v_add_f32 v195, v195, v{r}")
    a("ds_bpermute_b32 v194, v24, v195")
    a("s_waitcnt lgkmcnt(0)")
    a("v_add_f32 v195, v195, v194")
    a("ds_bpermute_b32 v194, v25, v195")
    a("s_waitcnt lgkmcnt(0)")
    a("v_add_f32 v195, v195, v194")
    a("v_rcp_f32 v195, v195")
    a("s_nop 0")
    for i in range(12):
        a(f"v_mul_f32 v{AS+i}, v{AS+i}, v195")
    for t in range(3):
        a(f"v_cvt_pk_bf16_f32 v{196+2*t}, v{AS+4*t}, v{AS+1+4*t}")
        a(f"v_cvt_pk_bf16_f32 v{197+2*t}, v{AS+2+4*t}, v{AS+3+4*t}")
    for dt in range(2):
        for t in range(3):
            a(f"ds_read_b64_tr_b16 v[{208+2*(dt*3+t)}:{209+2*(dt*3+t)}], v21 offset:{L_V + t*16*VSTR + dt*32}")
    for i in range(8):
        a(f"v_mov_b32 v{AS+i}, 0")
    a("s_waitcnt lgkmcnt(0)")
    for dt in range(2):
        for t in range(3):
            v = 208 + 2 * (dt * 3 + t)
            a(f"v_mfma_f32_16x16x16_bf16 v[{AS+4*dt}:{AS+3+4*dt}], v[{v}:{v+1}], v[{196+2*t}:{197+2*t}], v[{AS+4*dt}:{AS+3+4*dt}]")
    a("s_nop 7")
    a("s_nop 1")
    for dt in range(2):
        a(f"v_cvt_pk_bf16_f32 v{192+2*dt}, v{AS+4*dt}, v{AS+1+4*dt}")
        a(f"v_cvt_pk_bf16_f32 v{193+2*dt}, v{AS+2+4*dt}, v{AS+3+4*dt}")
        a(f"ds_write_b64 v22, v[{192+2*dt}:{193+2*dt}] offset:{L_O + dt*32}")
    a("s_waitcnt lgkmcnt(0)")
    a("s_barrier")
    for ks in range(4):
        a(f"ds_read_b128 v[{192+4*ks}:{195+4*ks}], v19 offset:{L_O+ks*64}")
    for i in range(8):
        a(f"v_mov_b32 v{AS+i}, 0")
    a("s_waitcnt lgkmcnt(0)")
    for tt in range(2):
        for ks in range(4):
            w = 32 + (tt * 4 + ks) * 4
            a(f"v_mfma_f32_16x16x32_bf16 v[{AS+4*tt}:{AS+3+4*tt}], v[{192+4*ks}:{195+4*ks}], v[{w}:{w+3}], v[{AS+4*tt}:{AS+3+4*tt}]")
    a("s_nop 7")
    a("s_nop 1")
    a(f"""
    s_add_u32 s3, s40, 1
    s_lshl_b32 s3, s3, 15
    s_add_u32 s3, s3, 0x{WS['memacc']:x}
    v_cmp_gt_u32 vcc, 32, v1
    s_and_saveexec_b64 s[44:45], vcc
    """)
    for tt in range(2):
        for r in range(4):
            a(f"buffer_atomic_add_f32 v{AS+4*tt+r}, v23, s[16:19], s3 offen offset:{tt*64}")
            if r < 3:
                a("s_add_u32 s3, s3, 4096")
        a("s_sub_u32 s3, s3, 12288")
    a("s_mov_b64 exec, s[44:45]")
    a("s_waitcnt vmcnt(0)")
    a("s_barrier")
    nocnt = a.newlabel("chain_nocnt")
    a(f"""
    s_cmp_lg_u32 s38, 0
    s_cbranch_scc1 {nocnt}
    s_add_u32 s3, s40, 1
    s_lshl_b32 s3, s3, 15
    s_and_b32 s4, s2, {NSHARD-1}
    s_lshl_b32 s4, s4, 7
    s_add_u32 s3, s3, s4
    s_add_u32 s3, s3, 0x{WS['cnt']:x}
    v_mov_b32 v2, 1
    v_lshlrev_b32 v3, 10, v1
    v_cmp_gt_u32 vcc, 32, v1
    s_and_saveexec_b64 s[44:45], vcc
    buffer_atomic_add v2, v3, s[16:19], s3 offen
    s_mov_b64 exec, s[44:45]
    """)
    a.label(nocnt)
    a("s_add_u32 s40, s40, 1")
    a(f"s_branch {loop}")
    a.label(done)
    a("s_endpgm")

def gen_init(a, name):
    kernel_header(a, name)
    done = a.newlabel("init_done")
    make_srd(a, 8, SLOT['ws'], WS_SIZE)
    a(f"""
    s_cmp_ge_u32 s2, 1217
    s_cbranch_scc1 {done}
    s_lshl_b32 s3, s2, 12
    s_add_u32 s4, s3, 0x{WS['memacc']:x}
    s_cmp_lt_u32 s2, 512
    s_cbranch_scc1 {done}_go
    s_sub_u32 s4, s3, 0x200000
    s_add_u32 s4, s4, 0x{WS['e1']:x}
    s_cmp_lt_u32 s2, 704
    s_cbranch_scc1 {done}_go
    s_sub_u32 s4, s3, 0x2C0000
    s_add_u32 s4, s4, 0x{WS['cnt']:x}
    """)
    a.label(done + "_go")
    a("""
    v_lshlrev_b32 v1, 4, v0
    v_mov_b32 v2, 0
    v_mov_b32 v3, 0
    v_mov_b32 v4, 0
    v_mov_b32 v5, 0
    buffer_store_dwordx4 v[2:5], v1, s[8:11], s4 offen
    """)
    a.label(done)
    a("s_endpgm")
```
